```python
import torch

def _softmax(x, axis=-1):
    return torch.softmax(x, dim=axis)
def _gelu(x):
    return torch.nn.functional.gelu(x, approximate="tanh")
def _silu(x):
    return torch.nn.functional.silu(x)
def _sigmoid(x):
    return torch.sigmoid(x)
def _layernorm(x, axis=-1, eps=1e-5):
    m = x.mean(dim=axis, keepdim=True)
    v = x.var(dim=axis, keepdim=True, unbiased=False)
    return (x - m) / torch.sqrt(v + eps)
def _scatter_add(tgt, idx, src, axis=0):
    return tgt.clone().index_add_(axis, idx, src)
def _segment_sum(src, seg, n):
    out = torch.zeros((n,) + src.shape[1:], dtype=src.dtype)
    return out.index_add_(0, seg, src)
def _pad(x, pw):
    flat = tuple(v for pair in reversed(pw) for v in pair)
    return torch.nn.functional.pad(x, flat)

kernel_name = 'concat_heads__mha_block_cached__mha_block_cached__near_ridge'

def setup_inputs():

    _w = (lambda a: (lambda t: t.to(torch.bfloat16) if t.is_floating_point() else t)(torch.as_tensor(a)))
    def _A_setup():
        B, Sq, D = 16, 240, 448
        H, Sk, Dh = 16, 512, 256
        return {
            "x": _w((lambda *s: torch.randn(*s, dtype=torch.bfloat16) * 0.8)(B, Sq, D)),
            "k_cache": _w((lambda *s: torch.randn(*s, dtype=torch.bfloat16) * 0.8)(B, H, Sk, Dh)),
            "v_cache": _w((lambda *s: torch.randn(*s, dtype=torch.bfloat16) * 0.05)(B, H, Sk, Dh)),
            "wq": _w((lambda *s: torch.randn(*s, dtype=torch.bfloat16) * 0.8)(D, H * Dh) * (D ** -0.5)),
            "wo": _w((lambda *s: torch.randn(*s, dtype=torch.bfloat16) * 0.05)(H * Dh, D) * ((H * Dh) ** -0.5)),
        }
    _A_in = _A_setup()

    def _B_setup():
        B, Sq, D = 16, 240, 448
        H, Sk, Dh = 16, 512, 256
        return {
            "x": _w((lambda *s: torch.randn(*s, dtype=torch.bfloat16) * 0.8)(B, Sq, D)),
            "k_cache": _w((lambda *s: torch.randn(*s, dtype=torch.bfloat16) * 0.8)(B, H, Sk, Dh)),
            "v_cache": _w((lambda *s: torch.randn(*s, dtype=torch.bfloat16) * 0.05)(B, H, Sk, Dh)),
            "wq": _w((lambda *s: torch.randn(*s, dtype=torch.bfloat16) * 0.8)(D, H * Dh) * (D ** -0.5)),
            "wo": _w((lambda *s: torch.randn(*s, dtype=torch.bfloat16) * 0.05)(H * Dh, D) * ((H * Dh) ** -0.5)),
        }
    _B_in = _B_setup()

    return {
        "A_x": _A_in["x"],
        "A_k_cache": _A_in["k_cache"],
        "A_v_cache": _A_in["v_cache"],
        "A_wq": _A_in["wq"],
        "A_wo": _A_in["wo"],
        "B_x": _B_in["x"],
        "B_k_cache": _B_in["k_cache"],
        "B_v_cache": _B_in["v_cache"],
        "B_wq": _B_in["wq"],
        "B_wo": _B_in["wo"],
    }

def reference(A_x, A_k_cache, A_v_cache, A_wq, A_wo, B_x, B_k_cache, B_v_cache, B_wq, B_wo):
    def _A_ref(x, k_cache, v_cache, wq, wo):
        B, Sq, D = x.shape
        H, Dh = 16, 256
        q = (lambda x, *d: x.permute(*d))((x @ wq).reshape(B, Sq, H, Dh), 0, 2, 1, 3)
        scores = torch.einsum("bhqd,bhkd->bhqk", q, k_cache) * (Dh ** -0.5)
        p = _softmax(scores, axis=-1)
        o = torch.einsum("bhqk,bhkd->bhqd", p, v_cache)
        return (lambda x, *d: x.permute(*d))(o, 0, 2, 1, 3).reshape(B, Sq, H * Dh) @ wo

    def _B_ref(x, k_cache, v_cache, wq, wo):
        B, Sq, D = x.shape
        H, Dh = 16, 256
        q = (lambda x, *d: x.permute(*d))((x @ wq).reshape(B, Sq, H, Dh), 0, 2, 1, 3)
        scores = torch.einsum("bhqd,bhkd->bhqk", q, k_cache) * (Dh ** -0.5)
        p = _softmax(scores, axis=-1)
        o = torch.einsum("bhqk,bhkd->bhqd", p, v_cache)
        return (lambda x, *d: x.permute(*d))(o, 0, 2, 1, 3).reshape(B, Sq, H * Dh) @ wo

    a = _A_ref(A_x, A_k_cache, A_v_cache, A_wq, A_wo)
    b = _B_ref(B_x, B_k_cache, B_v_cache, B_wq, B_wo)
    return torch.concatenate([a, b], axis=-1)
```

```python
import re

VALU, TRANS, DS, VMEM, SALU, WAIT, BAR, BR, LABEL, MFMA, NOP = (
    'valu', 'trans', 'ds', 'vmem', 'salu', 'wait', 'bar', 'br', 'label', 'mfma', 'nop')


def R(kind, base, n=1):
    return [f'{kind}{base + i}' for i in range(n)]


def rng(kind, base, n):
    return f'{kind}{base}' if n == 1 else f'{kind}[{base}:{base + n - 1}]'


class Op:
    def __init__(self, text, kind, rd=(), wr=(), need=None, tag=None, **meta):
        self.text = text
        self.kind = kind
        self.rd = list(rd)
        self.wr = list(wr)
        self.need = need or {}
        self.tag = tag
        self.meta = meta
        self.gap = None

    def __repr__(self):
        return f'<{self.kind}:{self.text}>'


class Gap:
    def __init__(self, mfma=None):
        self.mfma = mfma
        self.sc = []
        self.mem = []
        self.va = []
        self.raw = None
        self.pre = []
        self.name = ''

    def vslots(self):
        n = 0
        for o in self.mem:
            n += 2 if o.kind == VMEM else 1
        for o in self.va:
            n += 2 if o.kind == TRANS else 1
        return n

    def used(self):
        return self.vslots() + len(self.sc)

    def fits(self, op):
        if self.raw is not None:
            return False
        v = self.vslots()
        s = len(self.sc)
        if op.kind in (SALU, WAIT, BAR, BR):
            return v + s + 1 <= 3 if s >= 1 else True
        c = 2 if op.kind in (TRANS, VMEM) else 1
        if op.kind in (DS, VMEM) and self.mem:
            return False
        if v + c > 2:
            return False
        return max(s, 1) + v + c <= 3

    def add(self, op):
        if op.kind in (SALU, WAIT, BAR, BR):
            self.sc.append(op)
        elif op.kind in (DS, VMEM):
            self.mem.append(op)
        else:
            self.va.append(op)

    def ops(self):
        out = list(self.pre)
        if self.raw is not None:
            return out + self.raw
        out.append(self.mfma)
        return out + self.sc + self.mem + self.va

    def cost(self):
        if self.raw is not None:
            c = 0
            for o in self.raw:
                c += 8 if o.kind in (TRANS,) else (0 if o.kind == LABEL else 4)
            return c
        v = self.vslots()
        s = len(self.sc)
        t = 4 + 4 * max(s, 1 if v else s) + 4 * v
        if any(o.kind == VMEM for o in self.mem):
            t += 6
        return max(16, t)


class Timeline:
    def __init__(self):
        self.g = []
        self.overflow = []

    def __len__(self):
        return len(self.g)

    def mfma(self, op, name=''):
        gp = Gap(op)
        gp.name = name
        op.gap = len(self.g)
        self.g.append(gp)
        return op.gap

    def raw(self, ops=None, name=''):
        gp = Gap()
        gp.raw = list(ops or [])
        gp.name = name
        self.g.append(gp)
        i = len(self.g) - 1
        for o in gp.raw:
            o.gap = i
        return i

    def at(self, i, op):
        gp = self.g[i]
        if gp.raw is not None:
            gp.raw.append(op)
        else:
            if not gp.fits(op):
                self.overflow.append((i, op))
            gp.add(op)
        op.gap = i
        return i

    def place(self, op, lo, hi=None, prefer=None):
        hi = len(self.g) - 1 if hi is None else min(hi, len(self.g) - 1)
        assert lo <= hi, (op, lo, hi)
        if prefer is not None:
            for i in range(lo, min(hi, lo + prefer[1]) + 1):
                if self.g[i].raw is not None:
                    break
                if self.g[i].fits(op) and prefer[0](self.g[i]):
                    return self.at(i, op)
        for i in range(lo, hi + 1):
            if self.g[i].raw is not None:
                return self.at(i, op)
            if self.g[i].fits(op):
                return self.at(i, op)
        best = min(range(lo, hi + 1), key=lambda i: (self.g[i].used(), i)) if op.kind not in (DS, VMEM) else lo
        return self.at(best, op)

    def after(self, g, n=8):
        c = 0
        i = g
        while True:
            gp = self.g[i]
            if gp.raw is not None:
                return i
            head = (0 if i == g else 1) + len(gp.sc) + len(gp.mem)
            if c + head >= n:
                return i
            c += head + len(gp.va)
            i += 1

    def linear(self, a=0, b=None):
        out = []
        for gp in self.g[a:b]:
            out += gp.ops()
        return out

    def cost(self, a=0, b=None):
        return sum(gp.cost() for gp in self.g[a:b])

    def auto_lgkm(self):
        q = []

        def drain(n):
            del q[:max(0, len(q) - n)]

        def needed(op):
            regs = set(op.rd) | set(op.wr)
            k = -1
            for j, d in enumerate(q):
                if regs & set(d.wr):
                    k = j
            return k

        for i, gp in enumerate(self.g):
            if gp.raw is not None:
                new = []
                for o in gp.raw:
                    if o.kind == WAIT and 'lgkm' in o.meta:
                        drain(o.meta['lgkm'])
                    elif o.kind != LABEL:
                        k = needed(o)
                        if k >= 0:
                            n = min(len(q) - 1 - k, 15)
                            w = Op(f's_waitcnt lgkmcnt({n})', WAIT, lgkm=n)
                            w.gap = i
                            new.append(w)
                            drain(n)
                    new.append(o)
                    if o.kind == DS:
                        q.append(o)
                nxt = self.g[i + 1] if i + 1 < len(self.g) else None
                if nxt is not None and nxt.mfma is not None:
                    k = needed(nxt.mfma)
                    if k >= 0:
                        n = min(len(q) - 1 - k, 15)
                        w = Op(f's_waitcnt lgkmcnt({n})', WAIT, lgkm=n)
                        w.gap = i
                        new.append(w)
                        drain(n)
                gp.raw = new
                continue
            for o in gp.sc:
                if o.kind == WAIT and 'lgkm' in o.meta:
                    drain(o.meta['lgkm'])
            nxt = self.g[i + 1] if i + 1 < len(self.g) else None
            if nxt is not None and nxt.mfma is not None:
                k = needed(nxt.mfma)
                if k >= 0:
                    n = min(len(q) - 1 - k, 15)
                    w = Op(f's_waitcnt lgkmcnt({n})', WAIT, lgkm=n)
                    w.gap = i
                    gp.sc.insert(0, w)
                    drain(n)
            for o in gp.mem:
                if o.kind == DS:
                    q.append(o)


def resolve_vm(ops, preissued=()):
    issued = list(preissued)
    for o in ops:
        if o.kind == VMEM:
            issued.append(o.meta.get('vid'))
        elif o.kind == WAIT and 'need_vm' in o.meta:
            need = o.meta['need_vm']
            last = -1
            for vid in need:
                idx = [j for j, x in enumerate(issued) if x == vid]
                assert idx, ('wait for a VMEM op not yet issued', vid, o)
                last = max(last, idx[-1])
            n = len(issued) - 1 - last
            assert 0 <= n <= 63, (n, o)
            o.meta['vm'] = n
            t = f's_waitcnt vmcnt({n})'
            if 'lgkm' in o.meta:
                t += f' lgkmcnt({o.meta["lgkm"]})'
            o.text = t


def check(ops, tags=None, vm_pre=()):
    errs = []
    pos = 0
    lastw = {}
    lastcr = {}
    laststore = {}
    tags = dict(tags or {})
    lq = []
    vq = list(vm_pre)

    def err(o, m):
        errs.append(f'{m}: {o.text}  [gap {o.gap}]')

    for o in ops:
        if o.kind == LABEL:
            continue
        if o.kind == WAIT:
            if 'lgkm' in o.meta:
                del lq[:max(0, len(lq) - o.meta['lgkm'])]
            if 'vm' in o.meta:
                del vq[:max(0, len(vq) - o.meta['vm'])]
        touched = set(o.rd) | set(o.wr)
        for d in lq:
            if touched & set(d.wr):
                err(o, f'LDS result not waited ({d.text})')
        for d in vq:
            if d is not None and touched & set(d.wr):
                err(o, f'VMEM result not waited ({d.text})')
        for r, t in o.need.items():
            if tags.get(r) != t:
                err(o, f'tag mismatch on {r}: have {tags.get(r)} want {t}')
        isv = o.kind in (VALU, TRANS)
        for r in o.rd:
            if r not in lastw:
                continue
            p, w = lastw[r]
            dist = pos - p - 1
            req = 0
            if w.kind in (VALU, TRANS):
                if o.kind == MFMA:
                    req = 2
                if w.kind == TRANS and o.kind == VALU:
                    req = max(req, 1)
                if o.meta.get('permlane'):
                    req = max(req, 2)
                if o.meta.get('readlane'):
                    req = max(req, 1)
                if r[0] == 's' or r == 'vcc':
                    if isv:
                        req = max(req, 2)
                    if o.kind == VMEM:
                        req = max(req, 5)
            elif w.kind == MFMA:
                if o.kind == MFMA:
                    if r in o.meta['c']:
                        req = 0 if o.meta['c'] == w.wr else 6
                    if r in o.meta['ab']:
                        req = 8
                else:
                    req = 8
            elif w.kind == SALU and r == 'm0' and o.kind == VMEM:
                req = 1
            if dist < req:
                err(o, f'RAW wait states {dist} < {req} on {r} from "{w.text}"')
        for r in o.wr:
            if r in lastw:
                p, w = lastw[r]
                dist = pos - p - 1
                if w.kind == MFMA and o.kind != MFMA and dist < 8:
                    err(o, f'WAW wait states {dist} < 8 on {r}')
                if w.kind == MFMA and o.kind == MFMA and o.wr != w.wr and dist < 6:
                    err(o, f'MFMA WAW overlap on {r}')
            if isv and r in lastcr and pos - lastcr[r] - 1 < 3:
                err(o, f'WAR on MFMA SrcC {r}')
            if r in laststore and pos - laststore[r] - 1 < 2:
                err(o, f'WAR on store data {r}')
        for r in o.wr:
            lastw[r] = (pos, o)
            tg = o.tag.get(r) if isinstance(o.tag, dict) else o.tag
            tags[r] = tg
        if o.kind == MFMA:
            for r in o.meta['c']:
                lastcr[r] = pos
        if o.kind == VMEM and o.meta.get('store'):
            for r in o.meta['store']:
                laststore[r] = pos
        if o.kind == DS:
            lq.append(o)
        if o.kind == VMEM:
            vq.append(o)
        m = re.match(r's_nop (\d+)', o.text)
        pos += (int(m.group(1)) + 1) if m else 1
    return errs


def mfma(dk, d, ak, a, bk, b, czero=False, need=None, tag=None):
    D = R(dk, d, 4)
    A = R(ak, a, 4)
    B = R(bk, b, 4)
    c = '0' if czero else rng(dk, d, 4)
    rd = A + B + ([] if czero else D)
    return Op(f'v_mfma_f32_16x16x32_bf16 {rng(dk, d, 4)}, {rng(ak, a, 4)}, {rng(bk, b, 4)}, {c}',
              MFMA, rd, D, need=need, tag=tag, c=([] if czero else D), ab=A + B)


def salu(text, rd=(), wr=()):
    return Op(text, SALU, rd, wr)


def valu(text, rd=(), wr=(), **kw):
    return Op(text, VALU, rd, wr, **kw)


def trans(text, rd=(), wr=(), **kw):
    return Op(text, TRANS, rd, wr, **kw)


def label(name):
    return Op(f'{name}:', LABEL)


def nop(n):
    return Op(f's_nop {n}', NOP)


def text_of(ops):
    return '\n'.join(o.text if o.kind == LABEL else '  ' + o.text for o in ops)
```

```python
import math
import struct
from fw import *

SLOT = 16896
NSLOT = 9
LDS_BYTES = SLOT * NSLOT

vQ = 0
vS = [128, 160]
vF = 192
vNEGM = 224
vL = 228
vKP, vVP, vWP, vXP = 232, 233, 234, 235
vK, vV, vW, vX = 236, 237, 238, 239
vDKV, vDW, vDX = 240, 241, 242
vMX = 243
vT = 244
QACC = [64, 96, 128, 160]

sWAVE, sTASK = 4, 5
sK, sV, sW, sX, sO = 8, 12, 16, 20, 24
sBX, sBK, sBV, sBW = 28, 30, 32, 34
sBO = 36
sC, sTH = 38, 39
sRD, sWR, sSLOT, sEND = 40, 41, 42, 43
sKOFF, sVOFF, sWOFF, sXOFF = 44, 45, 46, 47
sOFKV, sOFW, sOFX = 49, 50, 51
c16384, c1032, c1080, c65536, cM57344, c450560, cWWRAP = 52, 53, 54, 55, 56, 57, 58
c7168, cXWRAP, c1088, c1024 = 59, 60, 61, 62
sSITE, sLOOP = 63, 64
sOST = 66
sKV0, sW0, sX0 = 74, 75, 76
sPAD = 77
sNRW, sNRX, sNRO = 78, 79, 80
cHI = 81


def f32(x):
    return '0x%08x' % struct.unpack('<I', struct.pack('<f', x))[0]


def Q(s, q):
    return vQ + (s * 4 + q) * 4


def S(b, q, t):
    return vS[b] + q * 8 + t * 4


def O(T, q):
    return (T * 4 + q) * 4


def XA(ks, q):
    return (ks * 4 + q) * 4


def stream():
    st = [('x', 0, 0), ('x', 0, 1)]
    for k in range(14):
        st.append(('w', k))
        if k <= 5:
            st += [('x', k + 1, 0), ('x', k + 1, 1)]
    st.append(('k', 0))
    for i in range(1, 16):
        st += [('k', i), ('v', i - 1)]
    st.append(('v', 15))
    assert len(st) == 60
    return st


ST = stream()


class K1:
    def __init__(self, cfg):
        self.cfg = cfg
        self.tl = Timeline()
        self.issue_pos = 9
        self.sites = []
        self.last_dma_gap = None

    def slot_dma_ops(self, pos):
        d = ST[pos % 60]
        kind = d[0]
        nt = self.cfg.get('kv_flags', '') if kind in 'kv' else self.cfg.get('wx_flags', '')
        nt = (' ' + nt) if nt else ''
        out = []
        off = {'k': sOFKV, 'v': sOFKV, 'w': sOFW, 'x': sOFX}[kind]
        for i in range(4):
            if i == 0:
                m0 = salu(f's_add_u32 m0, s{sWR}, s{off}', [f's{sWR}'], ['m0', 'scc'])
            else:
                inc = {'k': ['32'] * 3, 'v': ['32'] * 3,
                       'w': [f's{c1032}', f's{c1080}', f's{c1032}'],
                       'x': [f's{c1088}', f's{c1024}', f's{c1088}']}[kind][i - 1]
                m0 = salu(f's_add_u32 m0, m0, {inc}', ['m0'], ['m0', 'scc'])
            post = []
            if kind in 'kv':
                srd, so = (sK, sKOFF) if kind == 'k' else (sV, sVOFF)
                o = f' offset:{1024 * i}' if i else ''
                t = f'buffer_load_dwordx4 v{vDKV}, s[{srd}:{srd + 3}], s{so} offen{o}{nt} lds'
                rd = [f'v{vDKV}']
                if i == 3:
                    post.append(salu(f's_add_u32 s{so}, s{so}, s{c16384}', [f's{so}'], [f's{so}', 'scc']))
            elif kind == 'w':
                so = sWOFF
                t = f'buffer_load_dwordx4 v{vDW}, s[{sW}:{sW + 3}], s{so} offen{nt} lds'
                rd = [f'v{vDW}']
                c = [c65536, cM57344, c65536, cWWRAP if d[1] == 6 else c450560][i]
                post.append(salu(f's_add_u32 s{so}, s{so}, s{c}', [f's{so}'], [f's{so}', 'scc']))
            else:
                so = sXOFF
                t = f'buffer_load_dwordx4 v{vDX}, s[{sX}:{sX + 3}], s{so} offen{nt} lds'
                rd = [f'v{vDX}']
                c = cXWRAP if (d[2] == 1 and i == 3) else c7168
                post.append(salu(f's_add_u32 s{so}, s{so}, s{c}', [f's{so}'], [f's{so}', 'scc']))
            dma = Op(t, VMEM, rd + ['m0', f's{so}'], [], vid=('slot', pos))
            out.append((m0, dma, post))
        adv = self.ring_adv(sWR)
        return out, adv

    @staticmethod
    def ring_adv(s):
        return [salu(f's_add_u32 s{s}, s{s}, s{sSLOT}', [f's{s}'], [f's{s}', 'scc']),
                salu(f's_cmp_eq_u32 s{s}, s{sEND}', [f's{s}'], ['scc']),
                salu(f's_cselect_b32 s{s}, 0, s{s}', [f's{s}', 'scc'], [f's{s}'])]

    def place_scalar_seq(self, ops, lo, hi=None):
        tl = self.tl
        i = 0
        g = lo
        while i < len(ops):
            o = ops[i]
            if o.text.startswith('s_cmp'):
                pair = ops[i:i + 2]
                top = len(tl) - 1 if hi is None else hi
                for j in range(g, top + 1):
                    gp = tl.g[j]
                    if gp.raw is not None or (gp.vslots() + len(gp.sc) + 2 <= 3):
                        break
                else:
                    j = g
                tl.at(j, pair[0])
                tl.at(j, pair[1])
                g = j
                i += 2
            else:
                g = tl.place(o, g, hi)
                i += 1
        return g

    def issue_slots(self, n, gaps, free_gap):
        tl = self.tl
        gaps = list(gaps)
        prev = free_gap if self.last_dma_gap is None else max(free_gap, self.last_dma_gap)
        sprev = prev
        for _ in range(n):
            ops, adv = self.slot_dma_ops(self.issue_pos)
            self.issue_pos += 1
            for i, (m0, dma, post) in enumerate(ops):
                g = gaps.pop(0)
                assert g > prev + 1 or tl.g[g].raw is not None, (g, prev)
                if tl.g[g].raw is not None:
                    tl.at(g, m0)
                    tl.at(g, nop(0))
                    tl.at(g, dma)
                    for p in post:
                        tl.at(g, p)
                    if i == 0:
                        for a in adv:
                            tl.at(g, a)
                else:
                    mg = tl.place(m0, max(prev + 1, sprev), g - 1)
                    tl.at(g, dma)
                    for p in post:
                        tl.place(p, g + 1, g + 2)
                    if i == 0:
                        sprev = self.place_scalar_seq(adv, mg, None)
                prev = g
        self.last_dma_gap = prev

    def barrier(self, g, need_pos):
        meta = dict(lgkm=0)
        if need_pos:
            meta['need_vm'] = [('slot', p) for p in need_pos]
        self.tl.at(g, Op('s_waitcnt lgkmcnt(0)', WAIT, **meta))
        self.tl.at(g, Op('s_barrier', BAR))

    def set_addr(self, live, pat, g, desc):
        self.late.append((desc, live, pat, g))

    @staticmethod
    def addr_op(live, pat, desc):
        return valu(f'v_add_u32 v{live}, s{sRD}, v{pat}', [f's{sRD}', f'v{pat}'], [f'v{live}'], tag=('A',) + desc,
                    addr=desc)

    def do_set_addr(self, desc, live, pat, g):
        tl = self.tl
        lo = max(g, self.rd_ready)
        vg = tl.place(self.addr_op(live, pat, desc), lo, g + 2)
        self.rd_ready = self.place_scalar_seq(self.ring_adv(sRD), vg + 1, None)

    def rd_k(self, n, t, s, slot):
        d = vF + 4 * slot
        return Op(f'ds_read_b128 v[{d}:{d + 3}], v{vK} offset:{t * 8448 + 64 * s}', DS, [f'v{vK}'], R('v', d, 4),
                  tag=('K', n, t, s), need={f'v{vK}': ('A', 'k', n)}, slot=('k', n))

    def rd_v(self, n, T, t):
        d = vF + 4 * (T & 7) + 2 * t
        return Op(f'ds_read_b64_tr_b16 v[{d}:{d + 1}], v{vV} offset:{t * 8448 + 32 * T}', DS, [f'v{vV}'], R('v', d, 2),
                  tag=('V', n, T), need={f'v{vV}': ('A', 'v', n)}, slot=('v', n))

    def rd_w(self, k, p, u, s, a):
        d = vF + 16 * (p & 1) + 4 * (2 * u + s) + 2 * a
        return Op(f'ds_read_b64_tr_b16 v[{d}:{d + 1}], v{vW} offset:{s * 8448 + a * 256 + 64 * p + 8 * u}', DS,
                  [f'v{vW}'], R('v', d, 2), tag=('W', k, p, u, s), need={f'v{vW}': ('A', 'w', k)}, slot=('w', k))

    def rd_x(self, k, tq, s):
        d = XA(2 * k + s, tq)
        return Op(f'ds_read_b128 a[{d}:{d + 3}], v{vX} offset:{(tq & 1) * 2112 + 64 * s}', DS, [f'v{vX}'], R('a', d, 4),
                  tag=('X', 2 * k + s, tq), need={f'v{vX}': ('A', 'x', k, tq >> 1)}, slot=('x', k, tq >> 1))

    def w_group_reads(self, k, p):
        return [self.rd_w(k, p, u, s, a) for u in range(2) for s in range(2) for a in range(2)]

    def qp_step(self, k):
        tl = self.tl
        g0 = len(tl)
        G, kk = divmod(k, 7)
        done = {}
        for p in range(4):
            for u in range(2):
                for q in range(4):
                    ss = (0, 1) if q % 2 == 0 else (1, 0)
                    for i, s in enumerate(ss):
                        a = vF + 16 * (p & 1) + 4 * (2 * u + s)
                        acc = QACC[p] + 8 * q + 4 * u
                        need = {f'v{a + j}': ('W', k, p, u, s) for j in range(4)}
                        need.update({f'a{XA(2 * kk + s, q) + j}': ('X', 2 * kk + s, q) for j in range(4)})
                        first = kk == 0 and i == 0
                        if not first:
                            need.update({f'v{acc + j}': ('QA', G, p, u, q) for j in range(4)})
                        g = tl.mfma(mfma('v', acc, 'v', a, 'a', XA(2 * kk + s, q), czero=first, need=need,
                                         tag=('QA', G, p, u, q)), f'qp{k}')
                        done[(p, q)] = g
        return g0, done

    def qk_phase(self, n):
        tl = self.tl
        b = n & 1
        g0 = len(tl)
        done = {}
        for G in range(4):
            t, half = G >> 1, G & 1
            for q in range(4):
                ss = list(range(4 * half, 4 * half + 4))
                if q & 1:
                    ss.reverse()
                for i, s in enumerate(ss):
                    a = vF + 16 * (G & 1) + 4 * (s & 3)
                    need = {f'v{a + j}': ('K', n, t, s) for j in range(4)}
                    need.update({f'v{Q(s, q) + j}': ('Q', s, q) for j in range(4)})
                    first = half == 0 and i == 0
                    if not first:
                        need.update({f'v{S(b, q, t) + j}': ('S', n, q, t) for j in range(4)})
                    g = tl.mfma(mfma('v', S(b, q, t), 'v', a, 'v', Q(s, q), czero=first, need=need,
                                     tag=('S', n, q, t)), f'qk{n}')
                    done[(q, t)] = g
        return g0, done

    def pv_phase(self, n):
        tl = self.tl
        b = n & 1
        g0 = len(tl)
        done = {}
        for T in range(16):
            qs = range(4) if T % 2 == 0 else range(3, -1, -1)
            for q in qs:
                a = vF + 4 * (T & 7)
                need = {f'v{a + j}': ('V', n, T) for j in range(4)}
                need.update({f'v{S(b, q, 0) + j}': ('P', n, q) for j in range(4)})
                if n:
                    need.update({f'a{O(T, q) + j}': ('O', n - 1, T, q) for j in range(4)})
                done[(T, q)] = tl.mfma(mfma('a', O(T, q), 'v', a, 'v', S(b, q, 0), czero=(n == 0), need=need,
                                            tag=('O', n, T, q)), f'pv{n}')
        return g0, done

    def cross_lane(self, reg, tmp, opname, lo, place):
        g = lo
        for sw in ('v_permlane32_swap_b32', 'v_permlane16_swap_b32'):
            g = place(valu(f'v_mov_b32 v{tmp}, v{reg}', [f'v{reg}'], [f'v{tmp}']), g)
            g = place(valu(f'{sw} v{reg}, v{tmp}', [f'v{reg}', f'v{tmp}'], [f'v{reg}', f'v{tmp}'], permlane=True), g + 2)
            g = place(valu(f'{opname} v{reg}, v{reg}, v{tmp}', [f'v{reg}', f'v{tmp}'], [f'v{reg}']), g + 1)
        return g

    def a_stream(self, n, done):
        tl = self.tl
        b = n & 1
        g = 0
        first = True
        if n == 0:
            for q in range(4):
                r = S(b, q, 0)
                lo = tl.after(done[(q, 0)])
                gm = lo
                for j in range(4):
                    gm = tl.place(valu(f'v_mul_f32 v{r + j}, s{sC}, v{r + j}', [f'v{r + j}'], [f'v{r + j}'],
                                       need={f'v{r + j}': ('S', n, q, 0)}, tag=('S1', n, q, 0)), gm)
                m = vT + q
                gm = tl.place(valu(f'v_max3_f32 v{m}, v{r}, v{r + 1}, v{r + 2}', R('v', r, 3), [f'v{m}']), gm)
                gm = tl.place(valu(f'v_max_f32 v{m}, v{m}, v{r + 3}', [f'v{m}', f'v{r + 3}'], [f'v{m}']), gm)
                gm = self.cross_lane(m, vT + 4 + q, 'v_max_f32', gm, tl.place)
                if q == 3:
                    gm = tl.place(valu(f'v_max_f32 v{m}, s{sPAD}, v{m}', [f'v{m}'], [f'v{m}']), gm)
                gm = tl.place(valu(f'v_sub_f32 v{vNEGM + q}, 0, v{m}', [f'v{m}'], [f'v{vNEGM + q}']), gm)
                for j in range(4):
                    gm = tl.place(valu(f'v_sub_f32 v{r + j}, v{r + j}, v{m}', [f'v{r + j}', f'v{m}'], [f'v{r + j}'],
                                       need={f'v{r + j}': ('S1', n, q, 0)}, tag=('X', n, q)), gm)
                tl.place(valu(f'v_mov_b32 v{vL + q}, 0', [], [f'v{vL + q}']), lo)
                g = max(g, gm)
        for t in range(2):
            if n == 0 and t == 0:
                continue
            for q in range(4):
                r = S(b, q, t)
                g = max(g, tl.after(done[(q, t)]))
                for j in range(4):
                    g = tl.place(valu(f'v_fma_f32 v{r + j}, v{r + j}, s{sC}, v{vNEGM + q}',
                                      [f'v{r + j}', f'v{vNEGM + q}'], [f'v{r + j}'],
                                      need={f'v{r + j}': ('S', n, q, t)}, tag=('X', n, q)), g)
                    if j & 1:
                        if first:
                            o = valu(f'v_max_f32 v{vMX}, v{r + j - 1}, v{r + j}', [f'v{r + j - 1}', f'v{r + j}'], [f'v{vMX}'])
                            first = False
                        else:
                            o = valu(f'v_max3_f32 v{vMX}, v{vMX}, v{r + j - 1}, v{r + j}',
                                     [f'v{vMX}', f'v{r + j - 1}', f'v{r + j}'], [f'v{vMX}'])
                        g = tl.place(o, g)
        g = tl.place(valu(f'v_cmp_lt_f32 vcc, s{sTH}, v{vMX}', [f'v{vMX}'], ['vcc']), g)
        site = self.site_id(n)
        tl.place(salu(f's_mov_b32 s{sSITE}, {site}', [], [f's{sSITE}']), g - 8, g)
        g = tl.place(Op(f's_cbranch_vccnz L_rare{b}\nL_ret{site}:', BR, ['vcc'], []), g + 1)
        return g

    def site_id(self, n):
        sid = n if (n <= 1 or n >= 12) else (2 + (n & 1))
        if (sid, n & 1) not in self.sites:
            self.sites.append((sid, n & 1))
        return sid

    def b_stream(self, n, lo, hi):
        tl = self.tl
        b = n & 1
        eg = {}
        g = lo
        for q in range(4):
            for i in range(8):
                r = S(b, q, 0) + i
                g = tl.place(trans(f'v_exp_f32 v{r}, v{r}', [f'v{r}'], [f'v{r}'], need={f'v{r}': ('X', n, q)},
                                   tag=('E', n, q)), g, hi - 2)
                eg[(q, i)] = g
        ds_first = None
        g = lo
        last = lo
        for q in range(4):
            r0 = S(b, q, 0)
            for i in range(8):
                r = r0 + i
                raw = tl.g[eg[(q, i)]].raw is not None
                g = max(g, eg[(q, i)] + (0 if raw else 1))
                if raw:
                    tl.at(g, nop(0))
                g = tl.place(valu(f'v_add_f32 v{vL + q}, v{vL + q}, v{r}', [f'v{vL + q}', f'v{r}'], [f'v{vL + q}'],
                                  need={f'v{r}': ('E', n, q)}), g, hi, prefer=ds_first)
                if i & 1:
                    d = r0 + (i >> 1)
                    g = tl.place(valu(f'v_cvt_pk_bf16_f32 v{d}, v{r - 1}, v{r}', [f'v{r - 1}', f'v{r}'], [f'v{d}'],
                                      need={f'v{r}': ('E', n, q), f'v{r - 1}': ('E', n, q)}, tag=('P', n, q)),
                                 g, hi, prefer=ds_first)
                last = max(last, g)
        return last

    def q_convert(self, G, done):
        tl = self.tl
        g = 0
        for p in range(4):
            for q in range(4):
                src = QACC[p] + 8 * q
                dst = Q(4 * G + p, q)
                g = max(g, tl.after(done[(p, q)]))
                for j in range(4):
                    u = j >> 1
                    g = tl.place(valu(f'v_cvt_pk_bf16_f32 v{dst + j}, v{src + 2 * j}, v{src + 2 * j + 1}',
                                      [f'v{src + 2 * j}', f'v{src + 2 * j + 1}'], [f'v{dst + j}'],
                                      need={f'v{src + 2 * j}': ('QA', G, p, u, q), f'v{src + 2 * j + 1}': ('QA', G, p, u, q)},
                                      tag=('Q', 4 * G + p, q)), g)

    def build(self):
        tl = self.tl
        self.late = []
        self.rd_ready = 0
        pos = {d: i for i, d in enumerate(ST)}
        DS8 = [0, 1, 2, 4, 5, 6, 8, 9]
        issue = []
        marks = {}

        head = [label('L_body')]
        head.append(Op('', WAIT, need_vm=[('slot', 0), ('slot', 1)]))
        for ab in range(2):
            head.append(self.addr_op(vX, vXP, ('x', 0, ab)))
            head += self.ring_adv(sRD)
            head += [self.rd_x(0, 2 * ab + tq, s) for tq in range(2) for s in range(2)]
        head.append(self.addr_op(vW, vWP, ('w', 0)))
        head += self.ring_adv(sRD)
        head.append(Op('', WAIT, lgkm=0, need_vm=[('slot', p) for p in (2, 3, 4)]))
        head.append(Op('s_barrier', BAR))
        head += self.w_group_reads(0, 0)
        hg = tl.raw(head, 'head')

        qdone = {}
        steps = []
        for k in range(14):
            g0, done = self.qp_step(k)
            steps.append(g0)
            if k in (6, 13):
                qdone[k // 7] = done
        qk = {}
        pv = {}
        qk[0] = self.qk_phase(0)
        for j in range(16):
            marks[j] = len(tl)
            if j < 15:
                qk[j + 1] = self.qk_phase(j + 1)
            else:
                fin = tl.raw([], 'fin15')
            pv[j] = self.pv_phase(j)
        tail = tl.raw([], 'tail')
        self.marks = marks

        issue.append((2, [steps[0] + 3 + 4 * i for i in range(8)], hg))
        for k in range(14):
            g0 = steps[k]
            for p in range(1, 4):
                for o, d in zip(self.w_group_reads(k, p), DS8):
                    tl.at(g0 + 16 * (p - 1) + d, o)
            if k <= 5:
                for ab in range(2):
                    self.set_addr(vX, vXP, g0 + 16 * ab + 6, ('x', k + 1, ab))
                    rds = [self.rd_x(k + 1, 2 * ab + tq, s) for tq in range(2) for s in range(2)]
                    for o, d in zip(rds, [10, 12, 13, 14]):
                        tl.at(g0 + 16 * ab + d, o)
            if k < 13:
                self.set_addr(vW, vWP, g0 + 43, ('w', k + 1))
                need = [pos[('w', k + 1)]] + ([pos[('x', k + 2, 0)], pos[('x', k + 2, 1)]] if k <= 4 else [])
                self.barrier(g0 + 47, need)
                for o, d in zip(self.w_group_reads(k + 1, 0), DS8):
                    tl.at(g0 + 48 + d, o)
            else:
                self.set_addr(vK, vKP, g0 + 43, ('k', 0))
                self.barrier(g0 + 47, [pos[('k', 0)]])
                for s in range(4):
                    tl.at(g0 + 48 + 2 * s, self.rd_k(0, 0, s, s))
            nfree = 3 if k <= 5 else 1
            issue.append((nfree, [g0 + 51 + 4 * i for i in range(4 * nfree)], g0 + 47))
        for n in range(16):
            g0 = qk[n][0]
            for G in range(1, 4):
                t, half = G >> 1, G & 1
                for i in range(4):
                    tl.at(g0 + 16 * (G - 1) + 2 * i, self.rd_k(n, t, 4 * half + i, 4 * (G & 1) + i))
            if n == 0:
                self.set_addr(vK, vKP, g0 + 43, ('k', 1))
                self.barrier(g0 + 47, [pos[('k', 1)], pos[('v', 0)]])
                for s in range(4):
                    tl.at(g0 + 48 + 2 * s, self.rd_k(1, 0, s, s))
                issue.append((1, [qk[1][0] + d for d in (3, 11, 19, 27)], g0 + 47))
            else:
                j = n - 1
                self.set_addr(vV, vVP, g0 + 43, ('v', j))
                rds = [self.rd_v(j, T, t) for T in range(4) for t in range(2)]
                for o, d in zip(rds, DS8):
                    tl.at(g0 + 48 + d, o)
            if n == 0:
                continue
            self.pv_fixed(n - 1, pv, qk, pos, issue, DS8)
        self.pv_fixed(15, pv, qk, pos, issue, DS8)

        tl.auto_lgkm()

        issue.sort(key=lambda x: x[2])
        for nfree, gaps, bg in issue:
            self.issue_slots(nfree, gaps, bg)
        assert self.issue_pos == 69, self.issue_pos
        self.late.sort(key=lambda x: x[3])
        for desc, live, pat, g in self.late:
            self.do_set_addr(desc, live, pat, g)

        sw = [salu(f's_mov_b32 s{sW}, s{sBW}', [], [f's{sW}']), salu(f's_mov_b32 s{sW + 1}, s{sBW + 1}', [], [f's{sW + 1}']),
              salu(f's_mov_b32 s{sX}, s{sBX}', [], [f's{sX}']), salu(f's_mov_b32 s{sX + 1}, s{sBX + 1}', [], [f's{sX + 1}']),
              salu(f's_mov_b32 s{sW + 2}, s{sNRW}', [], [f's{sW + 2}']), salu(f's_mov_b32 s{sX + 2}, s{sNRX}', [], [f's{sX + 2}']),
              salu(f's_mov_b32 s{sNRW}, 0', [], [f's{sNRW}']), salu(f's_mov_b32 s{sNRX}, 0', [], [f's{sNRX}']),
              salu(f's_mov_b32 s{sWOFF}, s{sW0}', [], [f's{sWOFF}']), salu(f's_mov_b32 s{sXOFF}, s{sX0}', [], [f's{sXOFF}'])]
        g = qk[0][0] + 2
        for o in sw:
            g = tl.place(o, g)
        assert g < marks[0]

        self.q_convert(0, qdone[0])
        self.q_convert(1, qdone[1])
        chk = [self.a_stream(n, qk[n][1]) for n in range(16)]
        for n in range(16):
            hi = pv[n][0] - 2 if n < 15 else fin
            if n == 0:
                self.b_stream_dense(n, chk[n], hi)
            else:
                self.b_stream(n, chk[n], hi)
        tl.at(fin, nop(1))
        self.drain(pv[15], fin, tail)
        return tl

    def b_stream_dense(self, n, lo, hi):
        tl = self.tl
        b = n & 1
        ops = []
        for q in range(4):
            r0 = S(b, q, 0)
            for i in range(8):
                r = r0 + i
                ops.append(trans(f'v_exp_f32 v{r}, v{r}', [f'v{r}'], [f'v{r}'], need={f'v{r}': ('X', n, q)}, tag=('E', n, q)))
                if i:
                    ops.append(valu(f'v_add_f32 v{vL + q}, v{vL + q}, v{r - 1}', [f'v{vL + q}', f'v{r - 1}'], [f'v{vL + q}'],
                                    need={f'v{r - 1}': ('E', n, q)}))
                if i and i % 2 == 0:
                    d = r0 + (i >> 1) - 1
                    ops.append(valu(f'v_cvt_pk_bf16_f32 v{d}, v{r - 2}, v{r - 1}', [f'v{r - 2}', f'v{r - 1}'], [f'v{d}'],
                                    need={f'v{r - 2}': ('E', n, q), f'v{r - 1}': ('E', n, q)}, tag=('P', n, q)))
            ops.append(nop(0))
            ops.append(valu(f'v_add_f32 v{vL + q}, v{vL + q}, v{r0 + 7}', [f'v{vL + q}', f'v{r0 + 7}'], [f'v{vL + q}'],
                            need={f'v{r0 + 7}': ('E', n, q)}))
            ops.append(valu(f'v_cvt_pk_bf16_f32 v{r0 + 3}, v{r0 + 6}, v{r0 + 7}', [f'v{r0 + 6}', f'v{r0 + 7}'], [f'v{r0 + 3}'],
                            need={f'v{r0 + 6}': ('E', n, q), f'v{r0 + 7}': ('E', n, q)}, tag=('P', n, q)))
        w = lambda o: 2 if o.kind == TRANS else 1
        total = sum(w(o) for o in ops) + sum(tl.g[i].vslots() for i in range(lo, hi + 1))
        per = total / (hi - lo + 1)
        g = lo
        acc = 0.0
        k = 0
        while k < len(ops):
            budget = per * (g - lo + 1) - acc - tl.g[g].vslots()
            n0 = tl.g[g].vslots()
            while k < len(ops) and (budget >= w(ops[k]) - 0.5 or g == hi):
                budget -= w(ops[k])
                tl.at(g, ops[k])
                k += 1
            acc += tl.g[g].vslots()
            g += 1

    def pv_fixed(self, j, pv, qk, pos, issue, DS8):
        tl = self.tl
        g0 = pv[j][0]
        for T in range(4, 16):
            for t in range(2):
                tl.at(g0 + 3 * (T - 4) + t, self.rd_v(j, T, t))
        if j <= 13:
            self.set_addr(vK, vKP, g0 + 43, ('k', j + 2))
            self.barrier(g0 + 47, [pos[('k', j + 2)], pos[('v', j + 1)]])
            for s in range(4):
                tl.at(g0 + 48 + 2 * s, self.rd_k(j + 2, 0, s, s))
            issue.append((2, [g0 + d for d in (51, 55, 59, 63)] + [qk[j + 2][0] + d for d in (3, 11, 19, 27)], g0 + 47))
        elif j == 14:
            self.set_addr(vV, vVP, g0 + 43, ('v', 15))
            self.barrier(g0 + 47, [pos[('v', 15)]])
            rds = [self.rd_v(15, T, t) for T in range(4) for t in range(2)]
            for o, d in zip(rds, DS8):
                tl.at(g0 + 48 + d, o)
            issue.append((2, [g0 + d for d in (51, 55, 59, 63)] + [pv[15][0] + d for d in (2, 8, 14, 20)], g0 + 47))
        else:
            self.barrier(g0 + 39, [])
            issue.append((1, [g0 + d for d in (42, 46, 50, 54)], g0 + 39))

    def drain(self, pv15, fin, tail):
        tl = self.tl
        g0, done = pv15
        vR = vT
        g = g0
        for q in range(4):
            gq = tl.place(valu(f'v_mov_b32 v{vR + q}, v{vL + q}', [f'v{vL + q}'], [f'v{vR + q}']), g0)
            gq = self.cross_lane(vR + q, vT + 4 + q, 'v_add_f32', gq, tl.place)
            gq = tl.place(trans(f'v_rcp_f32 v{vR + q}, v{vR + q}', [f'v{vR + q}'], [f'v{vR + q}']), gq)
            g = max(g, gq + 1)
        tmp0 = vS[0]
        idx = 0
        stores = []
        tl.at(tail, nop(7))
        for sp in range(8):
            for q in range(4):
                tmp = tmp0 + 8 * (idx & 3)
                idx += 1
                g = max(g, tl.after(done[(2 * sp + 1, q)]))
                for i in range(8):
                    a = O(2 * sp + (i >> 2), q) + (i & 3)
                    g = tl.place(valu(f'v_accvgpr_read_b32 v{tmp + i}, a{a}', [f'a{a}'], [f'v{tmp + i}'],
                                      need={f'a{a}': ('O', 15, 2 * sp + (i >> 2), q)}), g)
                for i in range(8):
                    g = tl.place(valu(f'v_mul_f32 v{tmp + i}, v{tmp + i}, v{vR + q}', [f'v{tmp + i}', f'v{vR + q}'],
                                      [f'v{tmp + i}']), g)
                d = Q(sp, q)
                for i in range(4):
                    g = tl.place(valu(f'v_cvt_pk_bf16_f32 v{d + i}, v{tmp + 2 * i}, v{tmp + 2 * i + 1}',
                                      [f'v{tmp + 2 * i}', f'v{tmp + 2 * i + 1}'], [f'v{d + i}']), g)
                so = sOST + 2 * q + (sp >> 2)
                o = f' offset:{1024 * (sp & 3)}' if sp & 3 else ''
                fl = self.cfg.get('o_flags', '')
                st = Op(f'buffer_store_dwordx4 v[{d}:{d + 3}], v{vDKV}, s[{sO}:{sO + 3}], s{so} offen{o}{" " + fl if fl else ""}',
                        VMEM, R('v', d, 4) + [f'v{vDKV}'], [], vid=('store',), store=R('v', d, 4))
                stores.append(st)
                if g == tail:
                    while stores:
                        tl.at(tail, stores.pop(0))
        assert not stores
        for d, s in ((sK, sBK), (sV, sBV), (sO, sBO)):
            tl.at(tail, salu(f's_mov_b32 s{d}, s{s}', [], [f's{d}']))
            tl.at(tail, salu(f's_mov_b32 s{d + 1}, s{s + 1}', [], [f's{d + 1}']))
        tl.at(tail, salu(f's_mov_b32 s{sKOFF}, s{sKV0}', [], [f's{sKOFF}']))
        tl.at(tail, salu(f's_mov_b32 s{sVOFF}, s{sKV0}', [], [f's{sVOFF}']))
        tl.at(tail, salu(f's_add_u32 s{sTASK}, s{sTASK}, 1', [], [f's{sTASK}', 'scc']))
        tl.at(tail, salu(f's_cmp_lt_u32 s{sTASK}, 2', [], ['scc']))
        tl.at(tail, Op('s_cbranch_scc1 L_body', BR))

    def rare(self, b):
        o = [label(f'L_rare{b}'), nop(7)]
        t0, t1, e = vT + 8, vT + 9, vT + 4
        for q in range(4):
            r = S(b, q, 0)
            o.append(valu(f'v_max3_f32 v{t0}, v{r}, v{r + 1}, v{r + 2}'))
            o.append(valu(f'v_max3_f32 v{t0}, v{t0}, v{r + 3}, v{r + 4}'))
            o.append(valu(f'v_max3_f32 v{t0}, v{t0}, v{r + 5}, v{r + 6}'))
            o.append(valu(f'v_max_f32 v{t0}, v{t0}, v{r + 7}'))
            for sw in ('v_permlane32_swap_b32', 'v_permlane16_swap_b32'):
                o += [valu(f'v_mov_b32 v{t1}, v{t0}'), nop(1), valu(f'{sw} v{t0}, v{t1}'), nop(1),
                      valu(f'v_max_f32 v{t0}, v{t0}, v{t1}')]
            o.append(valu(f'v_ceil_f32 v{t0}, v{t0}'))
            o.append(valu(f'v_max_f32 v{t0}, 0, v{t0}'))
            for i in range(8):
                o.append(valu(f'v_sub_f32 v{r + i}, v{r + i}, v{t0}'))
            o.append(valu(f'v_sub_f32 v{vNEGM + q}, v{vNEGM + q}, v{t0}'))
            o.append(valu(f'v_cvt_i32_f32 v{e + q}, -v{t0}'))
            o.append(valu(f'v_ldexp_f32 v{vL + q}, v{vL + q}, v{e + q}'))
        if b == 0:
            o += [salu(f's_cmp_eq_u32 s{sSITE}, 0'), Op('s_cbranch_scc1 L_rare0_done', BR)]
        for q in range(4):
            p = S(b ^ 1, q, 0)
            for k in range(4):
                o += [valu(f'v_lshlrev_b32 v{t0}, 16, v{p + k}'), valu(f'v_and_b32 v{t1}, s{cHI}, v{p + k}'),
                      valu(f'v_ldexp_f32 v{t0}, v{t0}, v{e + q}'), valu(f'v_ldexp_f32 v{t1}, v{t1}, v{e + q}'),
                      valu(f'v_cvt_pk_bf16_f32 v{p + k}, v{t0}, v{t1}')]
        for T in range(16):
            for q in range(4):
                for r in range(4):
                    a = O(T, q) + r
                    t = t0 + (r & 1)
                    o += [valu(f'v_accvgpr_read_b32 v{t}, a{a}'), valu(f'v_ldexp_f32 v{t}, v{t}, v{e + q}'),
                          valu(f'v_accvgpr_write_b32 a{a}, v{t}')]
        if b == 0:
            o.append(label('L_rare0_done'))
        o.append(nop(1))
        mine = [s for s, bb in self.sites if bb == b]
        for s in mine[:-1]:
            o += [salu(f's_cmp_eq_u32 s{sSITE}, {s}'), Op(f's_cbranch_scc1 L_ret{s}', BR)]
        o.append(Op(f's_branch L_ret{mine[-1]}', BR))
        return o

    def prologue(self):
        L = []
        e = L.append
        e('s_cmp_ge_u32 s2, 256')
        e('s_cbranch_scc1 L_k1_end')
        e('s_load_dwordx8 s[84:91], s[0:1], 0')
        e(f's_load_dwordx8 s[{sBX}:{sBX + 7}], s[0:1], 40')
        e(f's_load_dwordx2 s[{sBO}:{sBO + 1}], s[0:1], 96')
        e('v_lshrrev_b32 v1, 6, v0')
        e('v_and_b32 v2, 63, v0')
        e(f'v_readfirstlane_b32 s{sWAVE}, v1')
        e('s_and_b32 s6, s2, 7')
        e('s_lshr_b32 s7, s2, 3')
        e('s_lshr_b32 s92, s6, 1')
        e('s_lshl_b32 s92, s92, 2')
        e('s_lshr_b32 s93, s7, 3')
        e('s_add_u32 s92, s92, s93')
        e('s_and_b32 s93, s6, 1')
        e('s_lshl_b32 s93, s93, 3')
        e('s_and_b32 s7, s7, 7')
        e('s_add_u32 s93, s93, s7')
        consts = {sC: f32(math.log2(math.e) / 16), sTH: f32(8.0), sSLOT: SLOT, sEND: SLOT * NSLOT, c16384: 16384,
                  c1032: 1032, c1080: 1080, c65536: 65536, cM57344: (-57344) & 0xffffffff, c450560: 450560,
                  cWWRAP: (256 - 6 * 524288 - 73728) & 0xffffffff, c7168: 7168, cXWRAP: (128 - 7 * 7168) & 0xffffffff,
                  c1088: 1088, c1024: 1024, cHI: 0xffff0000, sRD: 0, sWR: 0, sTASK: 0, sSITE: 0}
        for s, v in consts.items():
            e(f's_mov_b32 s{s}, {v if isinstance(v, str) else hex(v)}')
        w = f's{sWAVE}'
        e(f's_mul_i32 s{sOFKV}, {w}, 4224')
        e(f's_mov_b32 s{sOFX}, s{sOFKV}')
        e(f's_lshr_b32 s6, {w}, 1')
        e(f's_and_b32 s7, {w}, 1')
        e(f's_lshl_b32 s{sOFW}, {w}, 12')
        e('s_lshl_b32 s94, s6, 8')
        e(f's_add_u32 s{sOFW}, s{sOFW}, s94')
        e('s_lshl_b32 s94, s7, 7')
        e(f's_add_u32 s{sOFW}, s{sOFW}, s94')
        e(f's_lshl_b32 s{sKV0}, {w}, 12')
        e(f's_lshl_b32 s{sW0}, s6, 18')
        e('s_lshl_b32 s94, s7, 14')
        e(f's_add_u32 s{sW0}, s{sW0}, s94')
        e(f's_mul_i32 s{sX0}, {w}, 57344')
        for s, v in ((sKOFF, sKV0), (sVOFF, sKV0), (sWOFF, sW0), (sXOFF, sX0)):
            e(f's_mov_b32 s{s}, s{v}')
        e(f's_lshl_b32 s94, {w}, 19')
        for q in range(4):
            e(f's_add_u32 s{sOST + 2 * q}, s94, {hex(q * 131072)}')
            e(f's_add_u32 s{sOST + 2 * q + 1}, s94, {hex(q * 131072 + 4096)}')
        e(f's_cmp_eq_u32 {w}, 3')
        e(f's_mov_b32 s{sPAD}, {f32(-3.0e38)}')
        e(f's_cselect_b32 s{sPAD}, {f32(1000.0)}, s{sPAD}')
        e('v_lshrrev_b32 v3, 4, v2')
        e('v_and_b32 v4, 15, v2')
        e('v_bfe_u32 v5, v2, 2, 2')
        e('v_and_b32 v6, 3, v2')
        e('s_movk_i32 s94, 1056')
        e('v_and_b32 v7, 1, v5')
        e('v_lshl_add_u32 v7, v7, 2, v6')
        e('v_mul_lo_u32 v7, v7, s94')
        e('v_lshrrev_b32 v8, 1, v5')
        e('v_lshl_add_u32 v7, v8, 9, v7')
        e(f'v_lshl_add_u32 v{vKP}, v3, 4, v7')
        e('v_and_b32 v9, 1, v3')
        e('v_lshrrev_b32 v10, 1, v3')
        e('v_lshl_add_u32 v7, v9, 2, v5')
        e('v_mul_lo_u32 v7, v7, s94')
        e('v_lshl_add_u32 v7, v10, 9, v7')
        e(f'v_lshl_add_u32 v{vVP}, v6, 3, v7')
        e('s_movk_i32 s94, 2112')
        e('v_mul_lo_u32 v7, v5, s94')
        e(f'v_mul_lo_u32 v8, v9, s{c1032}')
        e('v_add_u32 v7, v7, v8')
        e('v_lshl_add_u32 v7, v10, 9, v7')
        e(f'v_lshl_add_u32 v{vWP}, v6, 4, v7')
        e('v_lshrrev_b32 v7, 3, v4')
        e(f'v_mul_lo_u32 v7, v7, s{c1088}')
        e('v_and_b32 v8, 7, v4')
        e('v_lshl_add_u32 v7, v8, 7, v7')
        e('v_lshrrev_b32 v8, 1, v8')
        e('v_xor_b32 v8, v8, v3')
        e('v_lshl_add_u32 v7, v8, 4, v7')
        e(f'v_add_u32 v{vXP}, s{sOFX}, v7')
        e(f'v_lshlrev_b32 v{vDKV}, 4, v2')
        e('v_lshlrev_b32 v7, 17, v10')
        e('v_lshl_add_u32 v7, v9, 15, v7')
        e(f'v_lshl_add_u32 v{vDW}, v4, 4, v7')
        e('v_lshrrev_b32 v7, 3, v2')
        e('s_movk_i32 s94, 896')
        e('v_mul_lo_u32 v7, v7, s94')
        e('v_and_b32 v8, 7, v2')
        e('v_xor_b32 v8, v8, v3')
        e(f'v_lshl_add_u32 v{vDX}, v8, 4, v7')
        e('s_waitcnt lgkmcnt(0)')
        e('s_mul_i32 s94, s92, 215040')
        e('s_lshl_b32 s95, s92, 4')
        e('s_add_u32 s95, s95, s93')
        e('s_lshl_b32 s95, s95, 18')
        e('s_lshl_b32 s96, s93, 9')
        e('s_mul_i32 s97, s92, 0x1e0000')
        e('s_lshl_b32 s98, s93, 13')
        e('s_add_u32 s97, s97, s98')
        for dst, src, off in ((sX, 84, 94), (sK, 86, 95), (sV, 88, 95), (sW, 90, 96), (sO, sBO, 97),
                              (sBX, sBX, 94), (sBK, sBK, 95), (sBV, sBV, 95), (sBW, sBW, 96)):
            e(f's_add_u32 s{dst}, s{src}, s{off}')
            e(f's_addc_u32 s{dst + 1}, s{src + 1}, 0')
            e(f's_and_b32 s{dst + 1}, s{dst + 1}, 0xffff')
        e(f's_add_u32 s{sBO}, s{sO}, 0x1e00000')
        e(f's_addc_u32 s{sBO + 1}, s{sO + 1}, 0')
        e(f's_sub_u32 s{sNRW}, 0x380000, s96')
        e(f's_mov_b32 s{sNRX}, 215040')
        e(f's_sub_u32 s{sNRO}, 0x1e0000, s98')
        e(f's_mov_b32 s{sK + 2}, 0x40000')
        e(f's_mov_b32 s{sV + 2}, 0x40000')
        e(f's_mov_b32 s{sW + 2}, s{sNRW}')
        e(f's_mov_b32 s{sX + 2}, s{sNRX}')
        e(f's_mov_b32 s{sO + 2}, 0')
        for s in (sK, sV, sW, sX, sO):
            e(f's_mov_b32 s{s + 3}, 0x20000')
        ops = []
        for p in range(9):
            dm, adv = self.slot_dma_ops(p)
            for i, (m0, dma, post) in enumerate(dm):
                ops += [m0, nop(0), dma] + post
                if i == 0:
                    ops += adv
        for i in range(32):
            ops.append(Op(f'buffer_store_dwordx4 v[0:3], v{vDKV}, s[{sO}:{sO + 3}], 0 offen', VMEM, [], [], vid=('store',)))
        ops.append(salu(f's_mov_b32 s{sO + 2}, s{sNRO}'))
        return '\n'.join('  ' + x for x in L), ops


def check_ring(body, pre):
    pos = {d: i for i, d in enumerate(ST)}
    assert [o.meta['addr'] for o in body if 'addr' in o.meta] == ST, 'ring read order differs from the stream'
    issued = list(pre)
    done = 0
    visible = set()
    reads_open = {}
    lg0 = set()
    nread = {}
    total = {}
    for o in body:
        if o.kind == DS:
            total[pos[o.meta['slot']]] = total.get(pos[o.meta['slot']], 0) + 1
    released = set(range(-9, 0))
    landed = lambda p: all(i < done for i, v in enumerate(issued) if v == ('slot', p)) and issued.count(('slot', p)) == 4
    for o in body:
        if o.kind == WAIT:
            if 'vm' in o.meta:
                done = max(done, len(issued) - o.meta['vm'])
            if o.meta.get('lgkm') == 0:
                lg0 = {p for p in nread if nread[p] == total[p]}
        elif o.kind == BAR:
            visible |= {p for p in range(60) if landed(p)}
            released |= lg0
        elif o.kind == DS:
            p = pos[o.meta['slot']]
            ok = landed(p) if o.meta['slot'][0] == 'x' else p in visible
            assert ok, ('read before publish', o.text, o.meta['slot'])
            nread[p] = nread.get(p, 0) + 1
        elif o.kind == VMEM:
            v = o.meta['vid']
            if v[0] == 'slot':
                assert v[1] - NSLOT in released, ('refill before release', v)
            issued.append(v)


def generate(name, cfg, verbose=True):
    k = K1(cfg)
    tl = k.build()
    pro_txt, pro_ops = k.prologue()
    body = tl.linear()
    pre = [o.meta.get('vid') for o in pro_ops if o.kind == VMEM]
    resolve_vm(body, pre)
    tail_v = [o.meta.get('vid') for o in body if o.kind == VMEM][-len(pre):]
    want = [(v if v == ('store',) else ('slot', v[1] + 60)) for v in pre]
    assert tail_v == want, 'VMEM queue at the back edge differs from the prologue'
    check_ring(body, pre)
    errs = check(body, vm_pre=[None] * len(pre))
    errs += check(body + body[1:200], vm_pre=[None] * len(pre))[len(errs):]
    for x in errs[:40]:
        print('ERR', x)
    assert not errs
    m = k.marks
    seg = lambda a, b: text_of(tl.linear(m[a], m[b]))
    for j in range(3, 11, 2):
        assert seg(1, 3) == seg(j, j + 2), f'loop body differs at iteration {j}'
    out = [f'.globl {name}', '.p2align 8', f'.type {name},@function', f'{name}:', pro_txt, text_of(pro_ops)]
    out.append(text_of(tl.linear(0, m[1] - 1)))
    last = tl.g[m[1] - 1].ops()
    out.append(text_of(last))
    out.append(f'  s_mov_b32 s{sLOOP}, 5')
    out.append('L_loop:')
    loop = tl.linear(m[1], m[3])
    out.append(text_of(loop))
    out.append(f'  s_sub_u32 s{sLOOP}, s{sLOOP}, 1\n  s_cmp_lg_u32 s{sLOOP}, 0\n  s_cbranch_scc1 L_loop')
    out.append(text_of(tl.linear(m[11])))
    out.append('  s_waitcnt vmcnt(0)\nL_k1_end:\n  s_endpgm')
    out.append(text_of(k.rare(0)))
    out.append(text_of(k.rare(1)))
    if verbose:
        names = {}
        for gp in tl.g:
            names.setdefault(gp.name, [0, 0])
            names[gp.name][0] += gp.cost()
            names[gp.name][1] += 16 if gp.mfma else 0
        print(' '.join(f'{n}:{c}/{i}' for n, (c, i) in names.items()))
        print('model cycles per task', tl.cost(), 'overflow ops', len(tl.overflow))
    return '\n'.join(out)


if __name__ == '__main__':
    txt = generate('k1_kernel', {})
    open('k1.s', 'w').write(txt)
```

```python
from fw import *

WSLOT = 28672
LDS_BYTES = 4 * WSLOT
NB = 32

vB = 0
vA = 128
vDW = 184
vRA = 192
vLN = 194
vT = 196

sWAVE = 4
sW, sO, sOUT = 8, 12, 16
sWOFF = 20
sOOFF = 21
sM0 = 25
c114688, c4096, c1024 = 26, 27, 28
sSL = 30
sLOOP = 34


def B(buf, s, q):
    return vB + buf * 32 + (s * 4 + q) * 4


def A(nt, s):
    return vA + (nt * 2 + s) * 4


def ACC(nt, q):
    return (nt * 4 + q) * 4


class K2:
    def __init__(self, cfg):
        self.cfg = cfg
        self.tl = Timeline()

    def rd_a(self, n, nt, s, u):
        d = A(nt, s) + 2 * u
        sl = n & 3
        off = (sl & 1) * WSLOT + s * 7168 + u * 3584 + 32 * nt
        r = vRA + (sl >> 1)
        return Op(f'ds_read_b64_tr_b16 v[{d}:{d + 1}], v{r} offset:{off}', DS, [f'v{r}'], R('v', d, 2),
                  tag=('A', n, nt, s), slot=n)

    def a_reads(self, n, nt):
        return [self.rd_a(n, nt, s, u) for s in range(2) for u in range(2)]

    def w_dma(self, n, i):
        fl = self.cfg.get('w2_flags', '')
        if i == 0:
            m0 = salu(f's_mov_b32 m0, s{sSL + (n & 3)}', [], ['m0'])
        else:
            m0 = salu(f's_add_u32 m0, m0, s{c1024}', ['m0'], ['m0', 'scc'])
        dma = Op(f'buffer_load_dwordx4 v{vDW + i}, s[{sW}:{sW + 3}], s{sWOFF} offen{" " + fl if fl else ""} lds', VMEM,
                 ['m0', f's{sWOFF}'], [], vid=('w', n))
        post = [salu(f's_add_u32 s{sWOFF}, s{sWOFF}, s{c114688}', [], [f's{sWOFF}', 'scc'])] if i == 6 else []
        return m0, dma, post

    def o_load(self, n, q, s):
        fl = self.cfg.get('o2_flags', '')
        d = B(n & 3, s, q)
        o = ' offset:1024' if s else ''
        ld = Op(f'buffer_load_dwordx4 v[{d}:{d + 3}], v{vLN}, s[{sO}:{sO + 3}], s{sOOFF + q} offen{o}{" " + fl if fl else ""}',
                VMEM, [f's{sOOFF + q}'], R('v', d, 4), tag=('B', n, s, q), vid=('o', n))
        post = [salu(f's_add_u32 s{sOOFF + q}, s{sOOFF + q}, s{c4096}', [], [f's{sOOFF + q}', 'scc'])] if s else []
        return ld, post

    def build(self):
        tl = self.tl
        head = []
        for n in range(4):
            for i in range(7 if n < 3 else 6):
                m0, dma, post = self.w_dma(n, i)
                head += [m0, nop(0), dma] + post
            if n < 3:
                for q in range(4):
                    for s in range(2):
                        ld, post = self.o_load(n, q, s)
                        head += [ld] + post
        for i in range(112):
            head.append(valu(f'v_accvgpr_write_b32 a{i}, 0', [], [f'a{i}'], tag='acc'))
        head.append(Op('', WAIT, need_vm=[('w', 0)]))
        head.append(Op('s_barrier', BAR))
        for nt in range(3):
            head += self.a_reads(0, nt)
        head.append(Op('', WAIT, need_vm=[('o', 0)]))
        tl.raw(head, 'head')
        blk = []
        done = {}
        for n in range(NB):
            blk.append(len(tl))
            for nt in range(7):
                qs = range(4) if nt % 2 == 0 else range(3, -1, -1)
                for qi, q in enumerate(qs):
                    for s in ((0, 1) if qi % 2 == 0 else (1, 0)):
                        need = {f'v{A(nt, s) + j}': ('A', n, nt, s) for j in range(4)}
                        need.update({f'v{B(n & 3, s, q) + j}': ('B', n, s, q) for j in range(4)})
                        done[(nt, q)] = tl.mfma(mfma('a', ACC(nt, q), 'v', A(nt, s), 'v', B(n & 3, s, q), need=need,
                                                     tag='acc'), 'blk')
        tail = tl.raw([], 'tail')
        self.blk = blk
        DSP = [[0, 1, 4, 5], [8, 9, 12, 13], [16, 17, 20, 21], [22, 24, 25, 26],
               [32, 33, 36, 37], [40, 41, 44, 45], [48, 49, 52, 53]]
        for n in range(NB):
            g0 = blk[n]
            for m in range(7):
                nn, nt = (n, m + 3) if m < 4 else (n + 1, m - 4)
                if nn < NB:
                    for o, d in zip(self.a_reads(nn, nt), DSP[m]):
                        tl.at(g0 + d, o)
            if n + 1 < NB:
                tl.at(g0 + 31, Op('', WAIT, lgkm=0, need_vm=[('w', n + 1)]))
                tl.at(g0 + 31, Op('s_barrier', BAR))
        tl.auto_lgkm()
        for n in range(NB):
            g0 = blk[n]
            if n + 3 < NB:
                m0, dma, post = self.w_dma(n + 3, 6)
                tl.place(m0, g0, g0 + 2)
                tl.at(g0 + 3, dma)
                for p in post:
                    tl.place(p, g0 + 4, g0 + 6)
                k = 0
                for q in range(4):
                    for s in range(2):
                        ld, post = self.o_load(n + 3, q, s)
                        g = g0 + [7, 11, 15, 19, 23, 27, 28, 30][k]
                        k += 1
                        tl.at(g, ld)
                        for p in post:
                            tl.place(p, g + 1, g + 3)
            if n + 4 < NB:
                prev = g0 + 31
                for i in range(6):
                    m0, dma, post = self.w_dma(n + 4, i)
                    g = g0 + 35 + 4 * i
                    tl.place(m0, prev + 1, g - 1)
                    tl.at(g, dma)
                    prev = g
            if n + 1 < NB:
                tl.place(Op('', WAIT, need_vm=[('o', n + 1)]), g0 + 54, g0 + 54)
        self.epilogue(tail)
        return tl

    def epilogue(self, tail):
        tl = self.tl
        e = lambda o: tl.at(tail, o)
        vx, vy, vo = vT, vT + 1, vT + 2
        e(Op('s_barrier', BAR))
        e(valu(f'v_add_u32 v{vx}, s{40}, v{vLN}', [], [f'v{vx}']))
        e(valu(f'v_add_u32 v{vy}, s{41}, v{vLN}', [], [f'v{vy}']))
        e(nop(7))
        for nt in range(7):
            for j in range(2):
                a = ACC(nt, 2 + j)
                e(Op(f'ds_write_b128 v{vx}, a[{a}:{a + 3}] offset:{(nt * 2 + j) * 1024}', DS, R('a', a, 4), []))
        for nt in range(7):
            for j in range(2):
                for r in range(4):
                    e(valu(f'v_accvgpr_read_b32 v{64 + (nt * 2 + j) * 4 + r}, a{ACC(nt, j) + r}', [f'a{ACC(nt, j) + r}'],
                           [f'v{64 + (nt * 2 + j) * 4 + r}']))
        e(Op('s_waitcnt lgkmcnt(0)', WAIT, lgkm=0))
        e(Op('s_barrier', BAR))
        for t in range(14):
            e(Op(f'ds_read_b128 v[{4 * t}:{4 * t + 3}], v{vy} offset:{t * 1024}', DS, [], R('v', 4 * t, 4)))
        for j in range(2):
            for nt in range(7):
                t = nt * 2 + j
                if j == 0:
                    e(Op(f's_waitcnt lgkmcnt({12 - 2 * nt})', WAIT, lgkm=12 - 2 * nt))
                for r in range(4):
                    e(valu(f'v_add_f32 v{4 * t + r}, v{4 * t + r}, v{64 + 4 * t + r}', [f'v{4 * t + r}', f'v{64 + 4 * t + r}'],
                           [f'v{4 * t + r}']))
                d = 128 + j * 16 + nt * 2
                for k in range(2):
                    e(valu(f'v_cvt_pk_bf16_f32 v{d + k}, v{4 * t + 2 * k}, v{4 * t + 2 * k + 1}',
                           [f'v{4 * t + 2 * k}', f'v{4 * t + 2 * k + 1}'], [f'v{d + k}']))
            e(nop(1))
            for sw in ('v_permlane32_swap_b32', 'v_permlane16_swap_b32'):
                for p in range(3):
                    d = 128 + j * 16 + p * 4
                    for k in range(2):
                        e(valu(f'{sw} v{d + k}, v{d + 2 + k}', [f'v{d + k}', f'v{d + 2 + k}'], [f'v{d + k}', f'v{d + 2 + k}'],
                               permlane=True))
            for p in range(3):
                d = 128 + j * 16 + p * 4
                e(Op(f'buffer_store_dwordx4 v[{d}:{d + 3}], v{vo}, s[{sOUT}:{sOUT + 3}], s{42 + j} offen offset:{64 * p}',
                     VMEM, R('v', d, 4), [], vid=('st',), store=R('v', d, 4)))
            d = 128 + j * 16 + 12
            e(Op(f'buffer_store_dwordx2 v[{d}:{d + 1}], v{vo + 1}, s[{sOUT}:{sOUT + 3}], s{42 + j} offen offset:192',
                 VMEM, R('v', d, 2), [], vid=('st',)))

    def prologue(self):
        L = []
        e = L.append
        e('s_cmp_ge_u32 s2, 240')
        e('s_cbranch_scc1 L_k2_end')
        e('s_load_dwordx2 s[44:45], s[0:1], 32')
        e('s_load_dwordx2 s[46:47], s[0:1], 72')
        e('s_load_dwordx2 s[48:49], s[0:1], 80')
        e('s_load_dwordx2 s[50:51], s[0:1], 96')
        e('v_lshrrev_b32 v1, 6, v0')
        e('v_and_b32 v2, 63, v0')
        e(f'v_readfirstlane_b32 s{sWAVE}, v1')
        e('s_and_b32 s6, s2, 3')
        e('s_mul_i32 s6, s6, 30')
        e('s_lshr_b32 s7, s2, 3')
        e('s_add_u32 s6, s6, s7')
        e('s_bfe_u32 s7, s2, 0x10002')
        e('s_lshr_b32 s52, s6, 2')
        e('s_and_b32 s53, s6, 3')
        w = f's{sWAVE}'
        e(f's_lshr_b32 s54, {w}, 1')
        e(f's_and_b32 s55, {w}, 1')
        e(f's_mov_b32 s{c114688}, 114688')
        e(f's_mov_b32 s{c4096}, 4096')
        e(f's_mov_b32 s{c1024}, 1024')
        e(f's_mul_i32 s{sM0}, {w}, 7168')
        for i in range(4):
            e(f's_add_u32 s{sSL + i}, s{sM0}, {i * WSLOT}')
        e(f's_mul_i32 s{sWOFF}, {w}, 28672')
        e('s_lshl_b32 s56, s54, 1')
        for q in range(4):
            e(f's_xor_b32 s57, s56, {q}')
            e('s_lshl_b32 s58, s55, 2')
            e('s_add_u32 s57, s57, s58')
            e('s_lshl_b32 s57, s57, 17')
            e('s_lshl_b32 s58, s54, 11')
            e(f's_add_u32 s{sOOFF + q}, s57, s58')
        e(f's_mul_i32 s40, {w}, 14336')
        e(f's_xor_b32 s57, {w}, 2')
        e('s_mul_i32 s41, s57, 14336')
        e('s_lshl_b32 s57, s55, 2')
        e('s_add_u32 s57, s57, s56')
        e('s_mul_i32 s42, s57, 28672')
        e('s_add_u32 s43, s42, 28672')
        e(f'v_lshlrev_b32 v{vLN}, 4, v2')
        e('v_lshrrev_b32 v3, 4, v2')
        e('v_and_b32 v4, 15, v2')
        e('v_bfe_u32 v5, v2, 2, 2')
        e('v_and_b32 v6, 3, v2')
        e('s_lshl_b32 s57, s54, 6')
        e('v_lshl_add_u32 v7, v3, 2, v5')
        e('v_add_u32 v7, s57, v7')
        e('s_movk_i32 s57, 224')
        e('v_mul_lo_u32 v7, v7, s57')
        e(f'v_lshl_add_u32 v{vRA}, v6, 3, v7')
        e(f'v_add_u32 v{vRA + 1}, {2 * WSLOT}, v{vRA}')
        e('s_mov_b32 s57, 4682')
        e('s_movk_i32 s58, 672')
        for i in range(7):
            e(f'v_add_u32 v7, {64 * i}, v2')
            e('v_mul_lo_u32 v8, v7, s57')
            e('v_lshrrev_b32 v8, 16, v8')
            e('v_mul_lo_u32 v8, v8, s58')
            e(f'v_lshl_add_u32 v{vDW + i}, v7, 4, v8')
        e('s_movk_i32 s57, 1792')
        e('v_mul_lo_u32 v7, v4, s57')
        e(f'v_lshl_add_u32 v{vT + 2}, v3, 4, v7')
        e(f'v_lshl_add_u32 v{vT + 3}, v3, 3, v7')
        e('s_waitcnt lgkmcnt(0)')
        e('s_cmp_eq_u32 s7, 0')
        e('s_cselect_b32 s44, s44, s46')
        e('s_cselect_b32 s45, s45, s47')
        e('s_mul_i32 s57, s53, 224')
        e(f's_add_u32 s{sW}, s44, s57')
        e(f's_addc_u32 s{sW + 1}, s45, 0')
        e(f's_and_b32 s{sW + 1}, s{sW + 1}, 0xffff')
        e(f's_sub_u32 s{sW + 2}, 0x380000, s57')
        e('s_mul_i32 s58, s7, 30')
        e('s_add_u32 s58, s58, s52')
        e('s_lshl_b32 s58, s58, 20')
        e(f's_add_u32 s{sO}, s50, s58')
        e(f's_addc_u32 s{sO + 1}, s51, 0')
        e(f's_and_b32 s{sO + 1}, s{sO + 1}, 0xffff')
        e(f's_mov_b32 s{sO + 2}, 0x100000')
        e('s_mul_i32 s58, s52, 229376')
        e('s_mul_i32 s59, s7, 896')
        e('s_add_u32 s57, s57, s59')
        e('s_add_u32 s58, s58, s57')
        e(f's_add_u32 s{sOUT}, s48, s58')
        e(f's_addc_u32 s{sOUT + 1}, s49, 0')
        e(f's_and_b32 s{sOUT + 1}, s{sOUT + 1}, 0xffff')
        e(f's_sub_u32 s{sOUT + 2}, 229376, s57')
        for s in (sW, sO, sOUT):
            e(f's_mov_b32 s{s + 3}, 0x20000')
        return '\n'.join('  ' + x for x in L)


def generate(name, cfg, verbose=True):
    for L in range(448):
        assert (L * 4682) >> 16 == L // 14
    k = K2(cfg)
    tl = k.build()
    body = tl.linear()
    resolve_vm(body)
    errs = check(body)
    for x in errs[:40]:
        print('ERR', x)
    assert not errs
    b = k.blk
    seg = lambda a, c: text_of(tl.linear(b[a], b[c]))
    for j in range(4, 28, 4):
        assert seg(0, 4) == seg(j, j + 4), f'loop body differs at block {j}'
    out = [f'.globl {name}', '.p2align 8', f'.type {name},@function', f'{name}:', k.prologue()]
    out.append(text_of(tl.linear(0, b[0])))
    out.append(f'  s_mov_b32 s{sLOOP}, 7\nL_k2_loop:')
    out.append(seg(0, 4))
    out.append(f'  s_sub_u32 s{sLOOP}, s{sLOOP}, 1\n  s_cmp_lg_u32 s{sLOOP}, 0\n  s_cbranch_scc1 L_k2_loop')
    out.append(text_of(tl.linear(b[28])))
    out.append('  s_waitcnt vmcnt(0)\nL_k2_end:\n  s_endpgm')
    if verbose:
        print('k2 model cycles', tl.cost(), 'overflow', len(tl.overflow))
    return '\n'.join(out)


if __name__ == '__main__':
    open('k2.s', 'w').write(generate('k2_kernel', {}))
```

```python
import sys, json
import k1, k2

NAME = 'concat_heads__mha_block_cached__mha_block_cached__near_ridge'
REF = f'cdna_kernels/{NAME}.s.ref'


def kd(name, vgpr, sgpr, acc):
    return f'''.p2align 6
.amdhsa_kernel {name}
  .amdhsa_next_free_vgpr {vgpr}
  .amdhsa_next_free_sgpr {sgpr}
  .amdhsa_accum_offset {acc}
  .amdhsa_group_segment_fixed_size 0
  .amdhsa_kernarg_size 104
  .amdhsa_user_sgpr_count 2
  .amdhsa_user_sgpr_kernarg_segment_ptr 1
  .amdhsa_system_sgpr_workgroup_id_x 1
.end_amdhsa_kernel
'''


def build(cfg, path):
    head = [l for l in open(REF).read().split('\n') if l.startswith(';   offset') or l.startswith('; Kernarg')]
    n1, n2 = NAME + '_kernel', 'out_proj_kernel'
    out = '\n'.join(head) + '\n'
    out += f'; @launch kernel={n1} grid=(256,1,1) block=(256,1,1) lds={k1.LDS_BYTES}\n'
    out += f'; @launch kernel={n2} grid=(240,1,1) block=(256,1,1) lds={k2.LDS_BYTES}\n'
    out += '.amdgcn_target "amdgcn-amd-amdhsa--gfx950"\n.text\n'
    out += k1.generate(n1, cfg) + '\n'
    out += k2.generate(n2, cfg) + '\n'
    out += '.section .rodata,"a"\n'
    out += kd(n1, 512, 102, 256) + kd(n2, 512, 102, 256)
    open(path, 'w').write(out)
    print(path, len(out), 'bytes')


if __name__ == '__main__':
    cfg = json.loads(sys.argv[2]) if len(sys.argv) > 2 else {}
    build(cfg, sys.argv[1] if len(sys.argv) > 1 else f'cdna_kernels/{NAME}.s')
```

```python
import math
import struct
from fw import *

SLOT = 16896
NSLOT = 9
LDS_BYTES = SLOT * NSLOT

vQ = 0
vS = [128, 160]
vF = 192
vNEGM = 224
vL = 228
vKP, vVP, vWP, vXP = 232, 233, 234, 235
vK, vV, vW, vX = 236, 237, 238, 239
vDKV, vDW, vDX = 240, 241, 242
vMX = 243
vT = 244
QACC = [64, 96, 128, 160]

sWAVE, sTASK = 4, 5
sK, sV, sW, sX, sO = 8, 12, 16, 20, 24
sBX, sBK, sBV, sBW = 28, 30, 32, 34
sBO = 36
sC, sTH = 38, 39
sRD, sWR, sSLOT, sEND = 40, 41, 42, 43
sKOFF, sVOFF, sWOFF, sXOFF = 44, 45, 46, 47
sOFKV, sOFW, sOFX = 49, 50, 51
c16384, c1032, c1080, c65536, cM57344, c450560, cWWRAP = 52, 53, 54, 55, 56, 57, 58
c7168, cXWRAP, c1088, c1024 = 59, 60, 61, 62
sSITE, sLOOP = 63, 64
sOST = 66
sKV0, sW0, sX0 = 74, 75, 76
sPAD = 77
sNRW, sNRX, sNRO = 78, 79, 80
cHI = 81


def f32(x):
    return '0x%08x' % struct.unpack('<I', struct.pack('<f', x))[0]


def Q(s, q):
    return vQ + (s * 4 + q) * 4


def S(b, q, t):
    return vS[b] + q * 8 + t * 4


def O(T, q):
    return (T * 4 + q) * 4


def XA(ks, q):
    return (ks * 4 + q) * 4


def stream():
    st = [('x', 0, 0), ('x', 0, 1)]
    for k in range(14):
        st.append(('w', k))
        if k <= 5:
            st += [('x', k + 1, 0), ('x', k + 1, 1)]
    st.append(('k', 0))
    for i in range(1, 16):
        st += [('k', i), ('v', i - 1)]
    st.append(('v', 15))
    assert len(st) == 60
    return st


ST = stream()


class K1:
    def __init__(self, cfg):
        self.cfg = cfg
        self.tl = Timeline()
        self.issue_pos = 9
        self.sites = []
        self.last_dma_gap = None

    def slot_dma_ops(self, pos):
        d = ST[pos % 60]
        kind = d[0]
        nt = self.cfg.get('kv_flags', '') if kind in 'kv' else self.cfg.get('wx_flags', '')
        nt = (' ' + nt) if nt else ''
        out = []
        off = {'k': sOFKV, 'v': sOFKV, 'w': sOFW, 'x': sOFX}[kind]
        for i in range(4):
            if i == 0:
                m0 = salu(f's_add_u32 m0, s{sWR}, s{off}', [f's{sWR}'], ['m0', 'scc'])
            else:
                inc = {'k': ['32'] * 3, 'v': ['32'] * 3,
                       'w': [f's{c1032}', f's{c1080}', f's{c1032}'],
                       'x': [f's{c1088}', f's{c1024}', f's{c1088}']}[kind][i - 1]
                m0 = salu(f's_add_u32 m0, m0, {inc}', ['m0'], ['m0', 'scc'])
            post = []
            if kind in 'kv':
                srd, so = (sK, sKOFF) if kind == 'k' else (sV, sVOFF)
                o = f' offset:{1024 * i}' if i else ''
                t = f'buffer_load_dwordx4 v{vDKV}, s[{srd}:{srd + 3}], s{so} offen{o}{nt} lds'
                rd = [f'v{vDKV}']
                if i == 3:
                    post.append(salu(f's_add_u32 s{so}, s{so}, s{c16384}', [f's{so}'], [f's{so}', 'scc']))
            elif kind == 'w':
                so = sWOFF
                t = f'buffer_load_dwordx4 v{vDW}, s[{sW}:{sW + 3}], s{so} offen{nt} lds'
                rd = [f'v{vDW}']
                c = [c65536, cM57344, c65536, cWWRAP if d[1] == 6 else c450560][i]
                post.append(salu(f's_add_u32 s{so}, s{so}, s{c}', [f's{so}'], [f's{so}', 'scc']))
            else:
                so = sXOFF
                t = f'buffer_load_dwordx4 v{vDX}, s[{sX}:{sX + 3}], s{so} offen{nt} lds'
                rd = [f'v{vDX}']
                c = cXWRAP if (d[2] == 1 and i == 3) else c7168
                post.append(salu(f's_add_u32 s{so}, s{so}, s{c}', [f's{so}'], [f's{so}', 'scc']))
            dma = Op(t, VMEM, rd + ['m0', f's{so}'], [], vid=('slot', pos))
            out.append((m0, dma, post))
        adv = self.ring_adv(sWR)
        return out, adv

    @staticmethod
    def ring_adv(s):
        return [salu(f's_add_u32 s{s}, s{s}, s{sSLOT}', [f's{s}'], [f's{s}', 'scc']),
                salu(f's_cmp_eq_u32 s{s}, s{sEND}', [f's{s}'], ['scc']),
                salu(f's_cselect_b32 s{s}, 0, s{s}', [f's{s}', 'scc'], [f's{s}'])]

    def place_scalar_seq(self, ops, lo, hi=None):
        tl = self.tl
        i = 0
        g = lo
        while i < len(ops):
            o = ops[i]
            if o.text.startswith('s_cmp'):
                pair = ops[i:i + 2]
                top = len(tl) - 1 if hi is None else hi
                for j in range(g, top + 1):
                    gp = tl.g[j]
                    if gp.raw is not None or (gp.vslots() + len(gp.sc) + 2 <= 3):
                        break
                else:
                    j = g
                tl.at(j, pair[0])
                tl.at(j, pair[1])
                g = j
                i += 2
            else:
                g = tl.place(o, g, hi)
                i += 1
        return g

    def issue_slots(self, n, gaps, free_gap):
        tl = self.tl
        gaps = list(gaps)
        prev = free_gap if self.last_dma_gap is None else max(free_gap, self.last_dma_gap)
        sprev = prev
        for _ in range(n):
            ops, adv = self.slot_dma_ops(self.issue_pos)
            self.issue_pos += 1
            for i, (m0, dma, post) in enumerate(ops):
                g = gaps.pop(0)
                assert g > prev + 1 or tl.g[g].raw is not None, (g, prev)
                if tl.g[g].raw is not None:
                    tl.at(g, m0)
                    tl.at(g, nop(0))
                    tl.at(g, dma)
                    for p in post:
                        tl.at(g, p)
                    if i == 0:
                        for a in adv:
                            tl.at(g, a)
                else:
                    mg = tl.place(m0, max(prev + 1, sprev), g - 1)
                    tl.at(g, dma)
                    for p in post:
                        tl.place(p, g + 1, g + 2)
                    if i == 0:
                        sprev = self.place_scalar_seq(adv, mg, None)
                prev = g
        self.last_dma_gap = prev

    def barrier_ops(self, need_pos):
        meta = dict(lgkm=0)
        if need_pos:
            meta['need_vm'] = [('slot', p) for p in need_pos]
        ops = [Op('s_waitcnt lgkmcnt(0)', WAIT, **meta), Op('s_barrier', BAR)]
        if self.cfg.get('stamp'):
            ops = ([salu('s_memtime s[82:83]')] + ops +
                   [salu('s_memtime s[92:93]\n  s_waitcnt lgkmcnt(0)\n  s_mov_b32 m0, s99\n  v_writelane_b32 v254, s82, m0\n'
                         '  v_writelane_b32 v255, s92, m0\n  s_add_u32 s99, s99, 1')])
        return ops

    def barrier(self, g, need_pos):
        for o in self.barrier_ops(need_pos):
            self.tl.at(g, o)

    def set_addr(self, live, pat, g, desc):
        self.late.append((desc, live, pat, g))

    @staticmethod
    def addr_op(live, pat, desc):
        return valu(f'v_add_u32 v{live}, s{sRD}, v{pat}', [f's{sRD}', f'v{pat}'], [f'v{live}'], tag=('A',) + desc,
                    addr=desc)

    def do_set_addr(self, desc, live, pat, g):
        tl = self.tl
        lo = max(g, self.rd_ready)
        vg = tl.place(self.addr_op(live, pat, desc), lo, g + 2)
        self.rd_ready = self.place_scalar_seq(self.ring_adv(sRD), vg + 1, None)

    def rd_k(self, n, t, s, slot):
        d = vF + 4 * slot
        return Op(f'ds_read_b128 v[{d}:{d + 3}], v{vK} offset:{t * 8448 + 64 * s}', DS, [f'v{vK}'], R('v', d, 4),
                  tag=('K', n, t, s), need={f'v{vK}': ('A', 'k', n)}, slot=('k', n))

    def rd_v(self, n, T, t):
        d = vF + 4 * (T & 7) + 2 * t
        return Op(f'ds_read_b64_tr_b16 v[{d}:{d + 1}], v{vV} offset:{t * 8448 + 32 * T}', DS, [f'v{vV}'], R('v', d, 2),
                  tag=('V', n, T), need={f'v{vV}': ('A', 'v', n)}, slot=('v', n))

    def rd_w(self, k, p, u, s, a):
        d = vF + 16 * (p & 1) + 4 * (2 * u + s) + 2 * a
        return Op(f'ds_read_b64_tr_b16 v[{d}:{d + 1}], v{vW} offset:{s * 8448 + a * 256 + 64 * p + 8 * u}', DS,
                  [f'v{vW}'], R('v', d, 2), tag=('W', k, p, u, s), need={f'v{vW}': ('A', 'w', k)}, slot=('w', k))

    def rd_x(self, k, tq, s):
        d = XA(2 * k + s, tq)
        return Op(f'ds_read_b128 a[{d}:{d + 3}], v{vX} offset:{(tq & 1) * 2112 + 64 * s}', DS, [f'v{vX}'], R('a', d, 4),
                  tag=('X', 2 * k + s, tq), need={f'v{vX}': ('A', 'x', k, tq >> 1)}, slot=('x', k, tq >> 1))

    def w_group_reads(self, k, p):
        return [self.rd_w(k, p, u, s, a) for u in range(2) for s in range(2) for a in range(2)]

    def qp_step(self, k):
        tl = self.tl
        g0 = len(tl)
        G, kk = divmod(k, 7)
        done = {}
        for p in range(4):
            for u in range(2):
                for q in range(4):
                    ss = (0, 1) if q % 2 == 0 else (1, 0)
                    for i, s in enumerate(ss):
                        a = vF + 16 * (p & 1) + 4 * (2 * u + s)
                        acc = QACC[p] + 8 * q + 4 * u
                        need = {f'v{a + j}': ('W', k, p, u, s) for j in range(4)}
                        need.update({f'a{XA(2 * kk + s, q) + j}': ('X', 2 * kk + s, q) for j in range(4)})
                        first = kk == 0 and i == 0
                        if not first:
                            need.update({f'v{acc + j}': ('QA', G, p, u, q) for j in range(4)})
                        g = tl.mfma(mfma('v', acc, 'v', a, 'a', XA(2 * kk + s, q), czero=first, need=need,
                                         tag=('QA', G, p, u, q)), f'qp{k}')
                        done[(p, q)] = g
        return g0, done

    def qk_phase(self, n):
        tl = self.tl
        b = n & 1
        g0 = len(tl)
        done = {}
        for G in range(4):
            t, half = G >> 1, G & 1
            for q in range(4):
                ss = list(range(4 * half, 4 * half + 4))
                if q & 1:
                    ss.reverse()
                for i, s in enumerate(ss):
                    a = vF + 16 * (G & 1) + 4 * (s & 3)
                    need = {f'v{a + j}': ('K', n, t, s) for j in range(4)}
                    need.update({f'v{Q(s, q) + j}': ('Q', s, q) for j in range(4)})
                    first = half == 0 and i == 0
                    if not first:
                        need.update({f'v{S(b, q, t) + j}': ('S', n, q, t) for j in range(4)})
                    g = tl.mfma(mfma('v', S(b, q, t), 'v', a, 'v', Q(s, q), czero=first, need=need,
                                     tag=('S', n, q, t)), f'qk{n}')
                    done[(q, t)] = g
        return g0, done

    def pv_phase(self, n):
        tl = self.tl
        b = n & 1
        g0 = len(tl)
        done = {}
        for T in range(16):
            qs = range(4) if T % 2 == 0 else range(3, -1, -1)
            for q in qs:
                a = vF + 4 * (T & 7)
                need = {f'v{a + j}': ('V', n, T) for j in range(4)}
                need.update({f'v{S(b, q, 0) + j}': ('P', n, q) for j in range(4)})
                if n:
                    need.update({f'a{O(T, q) + j}': ('O', n - 1, T, q) for j in range(4)})
                done[(T, q)] = tl.mfma(mfma('a', O(T, q), 'v', a, 'v', S(b, q, 0), czero=(n == 0), need=need,
                                            tag=('O', n, T, q)), f'pv{n}')
        return g0, done

    def cross_lane(self, reg, tmp, opname, lo, place):
        g = lo
        for sw in ('v_permlane32_swap_b32', 'v_permlane16_swap_b32'):
            g = place(valu(f'v_mov_b32 v{tmp}, v{reg}', [f'v{reg}'], [f'v{tmp}']), g)
            g = place(valu(f'{sw} v{reg}, v{tmp}', [f'v{reg}', f'v{tmp}'], [f'v{reg}', f'v{tmp}'], permlane=True), g + 2)
            g = place(valu(f'{opname} v{reg}, v{reg}, v{tmp}', [f'v{reg}', f'v{tmp}'], [f'v{reg}']), g + 1)
        return g

    def a_stream(self, n, done):
        tl = self.tl
        b = n & 1
        g = 0
        first = True
        if n == 0:
            for q in range(4):
                r = S(b, q, 0)
                lo = tl.after(done[(q, 0)])
                gm = lo
                for j in range(4):
                    gm = tl.place(valu(f'v_mul_f32 v{r + j}, s{sC}, v{r + j}', [f'v{r + j}'], [f'v{r + j}'],
                                       need={f'v{r + j}': ('S', n, q, 0)}, tag=('S1', n, q, 0)), gm)
                m = vT + q
                gm = tl.place(valu(f'v_max3_f32 v{m}, v{r}, v{r + 1}, v{r + 2}', R('v', r, 3), [f'v{m}']), gm)
                gm = tl.place(valu(f'v_max_f32 v{m}, v{m}, v{r + 3}', [f'v{m}', f'v{r + 3}'], [f'v{m}']), gm)
                gm = self.cross_lane(m, vT + 4 + q, 'v_max_f32', gm, tl.place)
                if q == 3:
                    gm = tl.place(valu(f'v_max_f32 v{m}, s{sPAD}, v{m}', [f'v{m}'], [f'v{m}']), gm)
                gm = tl.place(valu(f'v_sub_f32 v{vNEGM + q}, 0, v{m}', [f'v{m}'], [f'v{vNEGM + q}']), gm)
                for j in range(4):
                    gm = tl.place(valu(f'v_sub_f32 v{r + j}, v{r + j}, v{m}', [f'v{r + j}', f'v{m}'], [f'v{r + j}'],
                                       need={f'v{r + j}': ('S1', n, q, 0)}, tag=('X', n, q)), gm)
                tl.place(valu(f'v_mov_b32 v{vL + q}, 0', [], [f'v{vL + q}']), lo)
                g = max(g, gm)
        for t in range(2):
            if n == 0 and t == 0:
                continue
            for q in range(4):
                r = S(b, q, t)
                g = max(g, tl.after(done[(q, t)]))
                for j in range(4):
                    g = tl.place(valu(f'v_fma_f32 v{r + j}, v{r + j}, s{sC}, v{vNEGM + q}',
                                      [f'v{r + j}', f'v{vNEGM + q}'], [f'v{r + j}'],
                                      need={f'v{r + j}': ('S', n, q, t)}, tag=('X', n, q)), g)
                    if j & 1:
                        if first:
                            o = valu(f'v_max_f32 v{vMX}, v{r + j - 1}, v{r + j}', [f'v{r + j - 1}', f'v{r + j}'], [f'v{vMX}'])
                            first = False
                        else:
                            o = valu(f'v_max3_f32 v{vMX}, v{vMX}, v{r + j - 1}, v{r + j}',
                                     [f'v{vMX}', f'v{r + j - 1}', f'v{r + j}'], [f'v{vMX}'])
                        g = tl.place(o, g)
        g = tl.place(valu(f'v_cmp_lt_f32 vcc, s{sTH}, v{vMX}', [f'v{vMX}'], ['vcc']), g)
        site = self.site_id(n)
        tl.place(salu(f's_mov_b32 s{sSITE}, {site}', [], [f's{sSITE}']), g - 8, g)
        g = tl.place(Op(f's_cbranch_vccnz L_rare{b}\nL_ret{site}:', BR, ['vcc'], []), g + 1)
        return g

    def site_id(self, n):
        sid = n if (n <= 1 or n >= 12) else (2 + (n & 1))
        if (sid, n & 1) not in self.sites:
            self.sites.append((sid, n & 1))
        return sid

    def b_stream(self, n, lo, hi):
        tl = self.tl
        b = n & 1
        eg = {}
        g = lo
        for q in range(4):
            for i in range(8):
                r = S(b, q, 0) + i
                g = tl.place(trans(f'v_exp_f32 v{r}, v{r}', [f'v{r}'], [f'v{r}'], need={f'v{r}': ('X', n, q)},
                                   tag=('E', n, q)), g, hi - 2)
                eg[(q, i)] = g
        ds_first = None
        g = lo
        last = lo
        for q in range(4):
            r0 = S(b, q, 0)
            for i in range(8):
                r = r0 + i
                raw = tl.g[eg[(q, i)]].raw is not None
                g = max(g, eg[(q, i)] + (0 if raw else 1))
                if raw:
                    tl.at(g, nop(0))
                g = tl.place(valu(f'v_add_f32 v{vL + q}, v{vL + q}, v{r}', [f'v{vL + q}', f'v{r}'], [f'v{vL + q}'],
                                  need={f'v{r}': ('E', n, q)}), g, hi, prefer=ds_first)
                if i & 1:
                    d = r0 + (i >> 1)
                    g = tl.place(valu(f'v_cvt_pk_bf16_f32 v{d}, v{r - 1}, v{r}', [f'v{r - 1}', f'v{r}'], [f'v{d}'],
                                      need={f'v{r}': ('E', n, q), f'v{r - 1}': ('E', n, q)}, tag=('P', n, q)),
                                 g, hi, prefer=ds_first)
                last = max(last, g)
        return last

    def q_convert(self, G, done):
        tl = self.tl
        g = 0
        for p in range(4):
            for q in range(4):
                src = QACC[p] + 8 * q
                dst = Q(4 * G + p, q)
                g = max(g, tl.after(done[(p, q)]))
                for j in range(4):
                    u = j >> 1
                    g = tl.place(valu(f'v_cvt_pk_bf16_f32 v{dst + j}, v{src + 2 * j}, v{src + 2 * j + 1}',
                                      [f'v{src + 2 * j}', f'v{src + 2 * j + 1}'], [f'v{dst + j}'],
                                      need={f'v{src + 2 * j}': ('QA', G, p, u, q), f'v{src + 2 * j + 1}': ('QA', G, p, u, q)},
                                      tag=('Q', 4 * G + p, q)), g)

    def build(self):
        tl = self.tl
        self.late = []
        self.rd_ready = 0
        pos = {d: i for i, d in enumerate(ST)}
        DS8 = [0, 1, 2, 4, 5, 6, 8, 9]
        issue = []
        marks = {}

        head = [label('L_body')]
        head.append(Op('', WAIT, need_vm=[('slot', 0), ('slot', 1)]))
        for ab in range(2):
            head.append(self.addr_op(vX, vXP, ('x', 0, ab)))
            head += self.ring_adv(sRD)
            head += [self.rd_x(0, 2 * ab + tq, s) for tq in range(2) for s in range(2)]
        head.append(self.addr_op(vW, vWP, ('w', 0)))
        head += self.ring_adv(sRD)
        head += self.barrier_ops((2, 3, 4))
        head += self.w_group_reads(0, 0)
        hg = tl.raw(head, 'head')

        qdone = {}
        steps = []
        for k in range(14):
            g0, done = self.qp_step(k)
            steps.append(g0)
            if k in (6, 13):
                qdone[k // 7] = done
        qk = {}
        pv = {}
        qk[0] = self.qk_phase(0)
        for j in range(16):
            marks[j] = len(tl)
            if j < 15:
                qk[j + 1] = self.qk_phase(j + 1)
            else:
                fin = tl.raw([], 'fin15')
            pv[j] = self.pv_phase(j)
        tail = tl.raw([], 'tail')
        self.marks = marks

        issue.append((2, [steps[0] + 3 + 4 * i for i in range(8)], hg))
        for k in range(14):
            g0 = steps[k]
            for p in range(1, 4):
                for o, d in zip(self.w_group_reads(k, p), DS8):
                    tl.at(g0 + 16 * (p - 1) + d, o)
            if k <= 5:
                for ab in range(2):
                    self.set_addr(vX, vXP, g0 + 16 * ab + 6, ('x', k + 1, ab))
                    rds = [self.rd_x(k + 1, 2 * ab + tq, s) for tq in range(2) for s in range(2)]
                    for o, d in zip(rds, [10, 12, 13, 14]):
                        tl.at(g0 + 16 * ab + d, o)
            if k < 13:
                self.set_addr(vW, vWP, g0 + 43, ('w', k + 1))
                need = [pos[('w', k + 1)]] + ([pos[('x', k + 2, 0)], pos[('x', k + 2, 1)]] if k <= 4 else [])
                self.barrier(g0 + 47, need)
                for o, d in zip(self.w_group_reads(k + 1, 0), DS8):
                    tl.at(g0 + 48 + d, o)
            else:
                self.set_addr(vK, vKP, g0 + 43, ('k', 0))
                self.barrier(g0 + 47, [pos[('k', 0)]])
                for s in range(4):
                    tl.at(g0 + 48 + 2 * s, self.rd_k(0, 0, s, s))
            nfree = 3 if k <= 5 else 1
            issue.append((nfree, [g0 + 51 + 4 * i for i in range(4 * nfree)], g0 + 47))
        for n in range(16):
            g0 = qk[n][0]
            for G in range(1, 4):
                t, half = G >> 1, G & 1
                for i in range(4):
                    tl.at(g0 + 16 * (G - 1) + 2 * i, self.rd_k(n, t, 4 * half + i, 4 * (G & 1) + i))
            if n == 0:
                self.set_addr(vK, vKP, g0 + 43, ('k', 1))
                self.barrier(g0 + 47, [pos[('k', 1)], pos[('v', 0)]])
                for s in range(4):
                    tl.at(g0 + 48 + 2 * s, self.rd_k(1, 0, s, s))
                issue.append((1, [qk[1][0] + d for d in (3, 11, 19, 27)], g0 + 47))
            else:
                j = n - 1
                self.set_addr(vV, vVP, g0 + 43, ('v', j))
                rds = [self.rd_v(j, T, t) for T in range(4) for t in range(2)]
                for o, d in zip(rds, DS8):
                    tl.at(g0 + 48 + d, o)
            if n == 0:
                continue
            self.pv_fixed(n - 1, pv, qk, pos, issue, DS8)
        self.pv_fixed(15, pv, qk, pos, issue, DS8)

        tl.auto_lgkm()

        issue.sort(key=lambda x: x[2])
        for nfree, gaps, bg in issue:
            self.issue_slots(nfree, gaps, bg)
        assert self.issue_pos == 69, self.issue_pos
        self.late.sort(key=lambda x: x[3])
        for desc, live, pat, g in self.late:
            self.do_set_addr(desc, live, pat, g)

        sw = [salu(f's_mov_b32 s{sW}, s{sBW}', [], [f's{sW}']), salu(f's_mov_b32 s{sW + 1}, s{sBW + 1}', [], [f's{sW + 1}']),
              salu(f's_mov_b32 s{sX}, s{sBX}', [], [f's{sX}']), salu(f's_mov_b32 s{sX + 1}, s{sBX + 1}', [], [f's{sX + 1}']),
              salu(f's_mov_b32 s{sW + 2}, s{sNRW}', [], [f's{sW + 2}']), salu(f's_mov_b32 s{sX + 2}, s{sNRX}', [], [f's{sX + 2}']),
              salu(f's_mov_b32 s{sNRW}, 0', [], [f's{sNRW}']), salu(f's_mov_b32 s{sNRX}, 0', [], [f's{sNRX}']),
              salu(f's_mov_b32 s{sWOFF}, s{sW0}', [], [f's{sWOFF}']), salu(f's_mov_b32 s{sXOFF}, s{sX0}', [], [f's{sXOFF}'])]
        g = qk[0][0] + 2
        for o in sw:
            g = tl.place(o, g)
        assert g < marks[0]

        self.q_convert(0, qdone[0])
        self.q_convert(1, qdone[1])
        chk = [self.a_stream(n, qk[n][1]) for n in range(16)]
        for n in range(16):
            hi = pv[n][0] - 2 if n < 15 else fin
            if n == 0:
                self.b_stream_dense(n, chk[n], hi)
            else:
                self.b_stream(n, chk[n], hi)
        tl.at(fin, nop(1))
        self.drain(pv[15], fin, tail)
        return tl

    def b_stream_dense(self, n, lo, hi):
        tl = self.tl
        b = n & 1
        ops = []
        for q in range(4):
            r0 = S(b, q, 0)
            for i in range(8):
                r = r0 + i
                ops.append(trans(f'v_exp_f32 v{r}, v{r}', [f'v{r}'], [f'v{r}'], need={f'v{r}': ('X', n, q)}, tag=('E', n, q)))
                if i:
                    ops.append(valu(f'v_add_f32 v{vL + q}, v{vL + q}, v{r - 1}', [f'v{vL + q}', f'v{r - 1}'], [f'v{vL + q}'],
                                    need={f'v{r - 1}': ('E', n, q)}))
                if i and i % 2 == 0:
                    d = r0 + (i >> 1) - 1
                    ops.append(valu(f'v_cvt_pk_bf16_f32 v{d}, v{r - 2}, v{r - 1}', [f'v{r - 2}', f'v{r - 1}'], [f'v{d}'],
                                    need={f'v{r - 2}': ('E', n, q), f'v{r - 1}': ('E', n, q)}, tag=('P', n, q)))
            ops.append(nop(0))
            ops.append(valu(f'v_add_f32 v{vL + q}, v{vL + q}, v{r0 + 7}', [f'v{vL + q}', f'v{r0 + 7}'], [f'v{vL + q}'],
                            need={f'v{r0 + 7}': ('E', n, q)}))
            ops.append(valu(f'v_cvt_pk_bf16_f32 v{r0 + 3}, v{r0 + 6}, v{r0 + 7}', [f'v{r0 + 6}', f'v{r0 + 7}'], [f'v{r0 + 3}'],
                            need={f'v{r0 + 6}': ('E', n, q), f'v{r0 + 7}': ('E', n, q)}, tag=('P', n, q)))
        w = lambda o: 2 if o.kind == TRANS else 1
        total = sum(w(o) for o in ops) + sum(tl.g[i].vslots() for i in range(lo, hi + 1))
        per = total / (hi - lo + 1)
        g = lo
        acc = 0.0
        k = 0
        while k < len(ops):
            budget = per * (g - lo + 1) - acc - tl.g[g].vslots()
            n0 = tl.g[g].vslots()
            while k < len(ops) and (budget >= w(ops[k]) - 0.5 or g == hi):
                budget -= w(ops[k])
                tl.at(g, ops[k])
                k += 1
            acc += tl.g[g].vslots()
            g += 1

    def pv_fixed(self, j, pv, qk, pos, issue, DS8):
        tl = self.tl
        g0 = pv[j][0]
        for T in range(4, 16):
            for t in range(2):
                tl.at(g0 + 3 * (T - 4) + t, self.rd_v(j, T, t))
        if j <= 13:
            self.set_addr(vK, vKP, g0 + 43, ('k', j + 2))
            self.barrier(g0 + 47, [pos[('k', j + 2)], pos[('v', j + 1)]])
            for s in range(4):
                tl.at(g0 + 48 + 2 * s, self.rd_k(j + 2, 0, s, s))
            issue.append((2, [g0 + d for d in (51, 55, 59, 63)] + [qk[j + 2][0] + d for d in (3, 11, 19, 27)], g0 + 47))
        elif j == 14:
            self.set_addr(vV, vVP, g0 + 43, ('v', 15))
            self.barrier(g0 + 47, [pos[('v', 15)]])
            rds = [self.rd_v(15, T, t) for T in range(4) for t in range(2)]
            for o, d in zip(rds, DS8):
                tl.at(g0 + 48 + d, o)
            issue.append((2, [g0 + d for d in (51, 55, 59, 63)] + [pv[15][0] + d for d in (2, 8, 14, 20)], g0 + 47))
        else:
            self.barrier(g0 + 39, [])
            issue.append((1, [g0 + d for d in (42, 46, 50, 54)], g0 + 39))

    def drain(self, pv15, fin, tail):
        tl = self.tl
        g0, done = pv15
        vR = vT
        g = g0
        for q in range(4):
            gq = tl.place(valu(f'v_mov_b32 v{vR + q}, v{vL + q}', [f'v{vL + q}'], [f'v{vR + q}']), g0)
            gq = self.cross_lane(vR + q, vT + 4 + q, 'v_add_f32', gq, tl.place)
            gq = tl.place(trans(f'v_rcp_f32 v{vR + q}, v{vR + q}', [f'v{vR + q}'], [f'v{vR + q}']), gq)
            g = max(g, gq + 1)
        tmp0 = vS[0]
        idx = 0
        stores = []
        tl.at(tail, nop(7))
        for sp in range(8):
            for q in range(4):
                tmp = tmp0 + 8 * (idx & 3)
                idx += 1
                g = max(g, tl.after(done[(2 * sp + 1, q)]))
                for i in range(8):
                    a = O(2 * sp + (i >> 2), q) + (i & 3)
                    g = tl.place(valu(f'v_accvgpr_read_b32 v{tmp + i}, a{a}', [f'a{a}'], [f'v{tmp + i}'],
                                      need={f'a{a}': ('O', 15, 2 * sp + (i >> 2), q)}), g)
                for i in range(8):
                    g = tl.place(valu(f'v_mul_f32 v{tmp + i}, v{tmp + i}, v{vR + q}', [f'v{tmp + i}', f'v{vR + q}'],
                                      [f'v{tmp + i}']), g)
                d = Q(sp, q)
                for i in range(4):
                    g = tl.place(valu(f'v_cvt_pk_bf16_f32 v{d + i}, v{tmp + 2 * i}, v{tmp + 2 * i + 1}',
                                      [f'v{tmp + 2 * i}', f'v{tmp + 2 * i + 1}'], [f'v{d + i}']), g)
                so = sOST + 2 * q + (sp >> 2)
                o = f' offset:{1024 * (sp & 3)}' if sp & 3 else ''
                fl = self.cfg.get('o_flags', '')
                st = Op(f'buffer_store_dwordx4 v[{d}:{d + 3}], v{vDKV}, s[{sO}:{sO + 3}], s{so} offen{o}{" " + fl if fl else ""}',
                        VMEM, R('v', d, 4) + [f'v{vDKV}'], [], vid=('store',), store=R('v', d, 4))
                stores.append(st)
                if g == tail:
                    while stores:
                        tl.at(tail, stores.pop(0))
        assert not stores
        for d, s in ((sK, sBK), (sV, sBV), (sO, sBO)):
            tl.at(tail, salu(f's_mov_b32 s{d}, s{s}', [], [f's{d}']))
            tl.at(tail, salu(f's_mov_b32 s{d + 1}, s{s + 1}', [], [f's{d + 1}']))
        tl.at(tail, salu(f's_mov_b32 s{sKOFF}, s{sKV0}', [], [f's{sKOFF}']))
        tl.at(tail, salu(f's_mov_b32 s{sVOFF}, s{sKV0}', [], [f's{sVOFF}']))
        tl.at(tail, salu(f's_add_u32 s{sTASK}, s{sTASK}, 1', [], [f's{sTASK}', 'scc']))
        tl.at(tail, salu(f's_cmp_lt_u32 s{sTASK}, 2', [], ['scc']))
        tl.at(tail, Op('s_cbranch_scc1 L_body', BR))

    def rare(self, b):
        o = [label(f'L_rare{b}'), nop(7)]
        t0, t1, e = vT + 8, vT + 9, vT + 4
        for q in range(4):
            r = S(b, q, 0)
            o.append(valu(f'v_max3_f32 v{t0}, v{r}, v{r + 1}, v{r + 2}'))
            o.append(valu(f'v_max3_f32 v{t0}, v{t0}, v{r + 3}, v{r + 4}'))
            o.append(valu(f'v_max3_f32 v{t0}, v{t0}, v{r + 5}, v{r + 6}'))
            o.append(valu(f'v_max_f32 v{t0}, v{t0}, v{r + 7}'))
            for sw in ('v_permlane32_swap_b32', 'v_permlane16_swap_b32'):
                o += [valu(f'v_mov_b32 v{t1}, v{t0}'), nop(1), valu(f'{sw} v{t0}, v{t1}'), nop(1),
                      valu(f'v_max_f32 v{t0}, v{t0}, v{t1}')]
            o.append(valu(f'v_ceil_f32 v{t0}, v{t0}'))
            o.append(valu(f'v_max_f32 v{t0}, 0, v{t0}'))
            for i in range(8):
                o.append(valu(f'v_sub_f32 v{r + i}, v{r + i}, v{t0}'))
            o.append(valu(f'v_sub_f32 v{vNEGM + q}, v{vNEGM + q}, v{t0}'))
            o.append(valu(f'v_cvt_i32_f32 v{e + q}, -v{t0}'))
            o.append(valu(f'v_ldexp_f32 v{vL + q}, v{vL + q}, v{e + q}'))
        if b == 0:
            o += [salu(f's_cmp_eq_u32 s{sSITE}, 0'), Op('s_cbranch_scc1 L_rare0_done', BR)]
        for q in range(4):
            p = S(b ^ 1, q, 0)
            for k in range(4):
                o += [valu(f'v_lshlrev_b32 v{t0}, 16, v{p + k}'), valu(f'v_and_b32 v{t1}, s{cHI}, v{p + k}'),
                      valu(f'v_ldexp_f32 v{t0}, v{t0}, v{e + q}'), valu(f'v_ldexp_f32 v{t1}, v{t1}, v{e + q}'),
                      valu(f'v_cvt_pk_bf16_f32 v{p + k}, v{t0}, v{t1}')]
        for T in range(16):
            for q in range(4):
                for r in range(4):
                    a = O(T, q) + r
                    t = t0 + (r & 1)
                    o += [valu(f'v_accvgpr_read_b32 v{t}, a{a}'), valu(f'v_ldexp_f32 v{t}, v{t}, v{e + q}'),
                          valu(f'v_accvgpr_write_b32 a{a}, v{t}')]
        if b == 0:
            o.append(label('L_rare0_done'))
        o.append(nop(1))
        mine = [s for s, bb in self.sites if bb == b]
        for s in mine[:-1]:
            o += [salu(f's_cmp_eq_u32 s{sSITE}, {s}'), Op(f's_cbranch_scc1 L_ret{s}', BR)]
        o.append(Op(f's_branch L_ret{mine[-1]}', BR))
        return o

    def prologue(self):
        L = []
        e = L.append
        e('s_cmp_ge_u32 s2, 256')
        e('s_cbranch_scc1 L_k1_end')
        if self.cfg.get('stamp'):
            e('s_memtime s[94:95]\n  s_memrealtime s[96:97]\n  s_waitcnt lgkmcnt(0)\n  s_mov_b32 s100, s94\n  s_mov_b32 s101, s96\n  s_mov_b32 s99, 0')
        e('s_load_dwordx8 s[84:91], s[0:1], 0')
        e(f's_load_dwordx8 s[{sBX}:{sBX + 7}], s[0:1], 40')
        e(f's_load_dwordx2 s[{sBO}:{sBO + 1}], s[0:1], 96')
        e('v_lshrrev_b32 v1, 6, v0')
        e('v_and_b32 v2, 63, v0')
        e(f'v_readfirstlane_b32 s{sWAVE}, v1')
        e('s_and_b32 s6, s2, 7')
        e('s_lshr_b32 s7, s2, 3')
        e('s_lshr_b32 s92, s6, 1')
        e('s_lshl_b32 s92, s92, 2')
        e('s_lshr_b32 s93, s7, 3')
        e('s_add_u32 s92, s92, s93')
        e('s_and_b32 s93, s6, 1')
        e('s_lshl_b32 s93, s93, 3')
        e('s_and_b32 s7, s7, 7')
        e('s_add_u32 s93, s93, s7')
        consts = {sC: f32(math.log2(math.e) / 16), sTH: f32(8.0), sSLOT: SLOT, sEND: SLOT * NSLOT, c16384: 16384,
                  c1032: 1032, c1080: 1080, c65536: 65536, cM57344: (-57344) & 0xffffffff, c450560: 450560,
                  cWWRAP: (256 - 6 * 524288 - 73728) & 0xffffffff, c7168: 7168, cXWRAP: (128 - 7 * 7168) & 0xffffffff,
                  c1088: 1088, c1024: 1024, cHI: 0xffff0000, sRD: 0, sWR: 0, sTASK: 0, sSITE: 0}
        for s, v in consts.items():
            e(f's_mov_b32 s{s}, {v if isinstance(v, str) else hex(v)}')
        w = f's{sWAVE}'
        e(f's_mul_i32 s{sOFKV}, {w}, 4224')
        e(f's_mov_b32 s{sOFX}, s{sOFKV}')
        e(f's_lshr_b32 s6, {w}, 1')
        e(f's_and_b32 s7, {w}, 1')
        e(f's_lshl_b32 s{sOFW}, {w}, 12')
        e('s_lshl_b32 s94, s6, 8')
        e(f's_add_u32 s{sOFW}, s{sOFW}, s94')
        e('s_lshl_b32 s94, s7, 7')
        e(f's_add_u32 s{sOFW}, s{sOFW}, s94')
        e(f's_lshl_b32 s{sKV0}, {w}, 12')
        e(f's_lshl_b32 s{sW0}, s6, 18')
        e('s_lshl_b32 s94, s7, 14')
        e(f's_add_u32 s{sW0}, s{sW0}, s94')
        e(f's_mul_i32 s{sX0}, {w}, 57344')
        for s, v in ((sKOFF, sKV0), (sVOFF, sKV0), (sWOFF, sW0), (sXOFF, sX0)):
            e(f's_mov_b32 s{s}, s{v}')
        e(f's_lshl_b32 s94, {w}, 19')
        for q in range(4):
            e(f's_add_u32 s{sOST + 2 * q}, s94, {hex(q * 131072)}')
            e(f's_add_u32 s{sOST + 2 * q + 1}, s94, {hex(q * 131072 + 4096)}')
        e(f's_cmp_eq_u32 {w}, 3')
        e(f's_mov_b32 s{sPAD}, {f32(-3.0e38)}')
        e(f's_cselect_b32 s{sPAD}, {f32(1000.0)}, s{sPAD}')
        e('v_lshrrev_b32 v3, 4, v2')
        e('v_and_b32 v4, 15, v2')
        e('v_bfe_u32 v5, v2, 2, 2')
        e('v_and_b32 v6, 3, v2')
        e('s_movk_i32 s94, 1056')
        e('v_and_b32 v7, 1, v5')
        e('v_lshl_add_u32 v7, v7, 2, v6')
        e('v_mul_lo_u32 v7, v7, s94')
        e('v_lshrrev_b32 v8, 1, v5')
        e('v_lshl_add_u32 v7, v8, 9, v7')
        e(f'v_lshl_add_u32 v{vKP}, v3, 4, v7')
        e('v_and_b32 v9, 1, v3')
        e('v_lshrrev_b32 v10, 1, v3')
        e('v_lshl_add_u32 v7, v9, 2, v5')
        e('v_mul_lo_u32 v7, v7, s94')
        e('v_lshl_add_u32 v7, v10, 9, v7')
        e(f'v_lshl_add_u32 v{vVP}, v6, 3, v7')
        e('s_movk_i32 s94, 2112')
        e('v_mul_lo_u32 v7, v5, s94')
        e(f'v_mul_lo_u32 v8, v9, s{c1032}')
        e('v_add_u32 v7, v7, v8')
        e('v_lshl_add_u32 v7, v10, 9, v7')
        e(f'v_lshl_add_u32 v{vWP}, v6, 4, v7')
        e('v_lshrrev_b32 v7, 3, v4')
        e(f'v_mul_lo_u32 v7, v7, s{c1088}')
        e('v_and_b32 v8, 7, v4')
        e('v_lshl_add_u32 v7, v8, 7, v7')
        e('v_lshrrev_b32 v8, 1, v8')
        e('v_xor_b32 v8, v8, v3')
        e('v_lshl_add_u32 v7, v8, 4, v7')
        e(f'v_add_u32 v{vXP}, s{sOFX}, v7')
        e(f'v_lshlrev_b32 v{vDKV}, 4, v2')
        e('v_lshlrev_b32 v7, 17, v10')
        e('v_lshl_add_u32 v7, v9, 15, v7')
        e(f'v_lshl_add_u32 v{vDW}, v4, 4, v7')
        e('v_lshrrev_b32 v7, 3, v2')
        e('s_movk_i32 s94, 896')
        e('v_mul_lo_u32 v7, v7, s94')
        e('v_and_b32 v8, 7, v2')
        e('v_xor_b32 v8, v8, v3')
        e(f'v_lshl_add_u32 v{vDX}, v8, 4, v7')
        e('s_waitcnt lgkmcnt(0)')
        e('s_mul_i32 s94, s92, 215040')
        e('s_lshl_b32 s95, s92, 4')
        e('s_add_u32 s95, s95, s93')
        e('s_lshl_b32 s95, s95, 18')
        e('s_lshl_b32 s96, s93, 9')
        e('s_mul_i32 s97, s92, 0x1e0000')
        e('s_lshl_b32 s98, s93, 13')
        e('s_add_u32 s97, s97, s98')
        for dst, src, off in ((sX, 84, 94), (sK, 86, 95), (sV, 88, 95), (sW, 90, 96), (sO, sBO, 97),
                              (sBX, sBX, 94), (sBK, sBK, 95), (sBV, sBV, 95), (sBW, sBW, 96)):
            e(f's_add_u32 s{dst}, s{src}, s{off}')
            e(f's_addc_u32 s{dst + 1}, s{src + 1}, 0')
            e(f's_and_b32 s{dst + 1}, s{dst + 1}, 0xffff')
        e(f's_add_u32 s{sBO}, s{sO}, 0x1e00000')
        e(f's_addc_u32 s{sBO + 1}, s{sO + 1}, 0')
        e(f's_sub_u32 s{sNRW}, 0x380000, s96')
        e(f's_mov_b32 s{sNRX}, 215040')
        e(f's_sub_u32 s{sNRO}, 0x1e0000, s98')
        e(f's_mov_b32 s{sK + 2}, 0x40000')
        e(f's_mov_b32 s{sV + 2}, 0x40000')
        e(f's_mov_b32 s{sW + 2}, s{sNRW}')
        e(f's_mov_b32 s{sX + 2}, s{sNRX}')
        e(f's_mov_b32 s{sO + 2}, 0')
        for s in (sK, sV, sW, sX, sO):
            e(f's_mov_b32 s{s + 3}, 0x20000')
        ops = []
        for p in range(9):
            dm, adv = self.slot_dma_ops(p)
            for i, (m0, dma, post) in enumerate(dm):
                ops += [m0, nop(0), dma] + post
                if i == 0:
                    ops += adv
        for i in range(32):
            ops.append(Op(f'buffer_store_dwordx4 v[0:3], v{vDKV}, s[{sO}:{sO + 3}], 0 offen', VMEM, [], [], vid=('store',)))
        ops.append(salu(f's_mov_b32 s{sO + 2}, s{sNRO}'))
        return '\n'.join('  ' + x for x in L), ops


def check_ring(body, pre):
    pos = {d: i for i, d in enumerate(ST)}
    assert [o.meta['addr'] for o in body if 'addr' in o.meta] == ST, 'ring read order differs from the stream'
    issued = list(pre)
    done = 0
    visible = set()
    reads_open = {}
    lg0 = set()
    nread = {}
    total = {}
    for o in body:
        if o.kind == DS:
            total[pos[o.meta['slot']]] = total.get(pos[o.meta['slot']], 0) + 1
    released = set(range(-9, 0))
    landed = lambda p: all(i < done for i, v in enumerate(issued) if v == ('slot', p)) and issued.count(('slot', p)) == 4
    for o in body:
        if o.kind == WAIT:
            if 'vm' in o.meta:
                done = max(done, len(issued) - o.meta['vm'])
            if o.meta.get('lgkm') == 0:
                lg0 = {p for p in nread if nread[p] == total[p]}
        elif o.kind == BAR:
            visible |= {p for p in range(60) if landed(p)}
            released |= lg0
        elif o.kind == DS:
            p = pos[o.meta['slot']]
            ok = landed(p) if o.meta['slot'][0] == 'x' else p in visible
            assert ok, ('read before publish', o.text, o.meta['slot'])
            nread[p] = nread.get(p, 0) + 1
        elif o.kind == VMEM:
            v = o.meta['vid']
            if v[0] == 'slot':
                assert v[1] - NSLOT in released, ('refill before release', v)
            issued.append(v)


def generate(name, cfg, verbose=True):
    k = K1(cfg)
    tl = k.build()
    pro_txt, pro_ops = k.prologue()
    body = tl.linear()
    pre = [o.meta.get('vid') for o in pro_ops if o.kind == VMEM]
    resolve_vm(body, pre)
    tail_v = [o.meta.get('vid') for o in body if o.kind == VMEM][-len(pre):]
    want = [(v if v == ('store',) else ('slot', v[1] + 60)) for v in pre]
    assert tail_v == want, 'VMEM queue at the back edge differs from the prologue'
    check_ring(body, pre)
    errs = check(body, vm_pre=[None] * len(pre))
    errs += check(body + body[1:200], vm_pre=[None] * len(pre))[len(errs):]
    for x in errs[:40]:
        print('ERR', x)
    assert not errs
    m = k.marks
    seg = lambda a, b: text_of(tl.linear(m[a], m[b]))
    for j in range(3, 11, 2):
        assert seg(1, 3) == seg(j, j + 2), f'loop body differs at iteration {j}'
    out = [f'.globl {name}', '.p2align 8', f'.type {name},@function', f'{name}:', pro_txt, text_of(pro_ops)]
    out.append(text_of(tl.linear(0, m[1] - 1)))
    last = tl.g[m[1] - 1].ops()
    out.append(text_of(last))
    out.append(f'  s_mov_b32 s{sLOOP}, 5')
    out.append('L_loop:')
    loop = tl.linear(m[1], m[3])
    out.append(text_of(loop))
    out.append(f'  s_sub_u32 s{sLOOP}, s{sLOOP}, 1\n  s_cmp_lg_u32 s{sLOOP}, 0\n  s_cbranch_scc1 L_loop')
    out.append(text_of(tl.linear(m[11])))
    if cfg.get('stamp'):
        out.append(f'''  s_memtime s[82:83]
  s_waitcnt vmcnt(0) lgkmcnt(0)
  s_memtime s[92:93]
  s_memrealtime s[94:95]
  s_load_dwordx2 s[96:97], s[0:1], 96
  s_waitcnt lgkmcnt(0)
  s_add_u32 s{sO}, s96, 0x8000000
  s_addc_u32 s{sO + 1}, s97, 0
  s_and_b32 s{sO + 1}, s{sO + 1}, 0xffff
  s_mov_b32 s{sO + 2}, 0x400000
  s_lshl_b32 s6, s2, 2
  s_add_u32 s6, s6, s{sWAVE}
  s_lshl_b32 s6, s6, 10
  v_lshrrev_b32 v0, 2, v{vDKV}
  v_mov_b32 v1, 0
  v_writelane_b32 v1, s100, 0
  v_writelane_b32 v1, s101, 1
  v_writelane_b32 v1, s82, 2
  v_writelane_b32 v1, s92, 3
  v_writelane_b32 v1, s94, 4
  buffer_store_dword v254, v0, s[{sO}:{sO + 3}], s6 offen
  buffer_store_dword v255, v0, s[{sO}:{sO + 3}], s6 offen offset:256
  buffer_store_dword v1, v0, s[{sO}:{sO + 3}], s6 offen offset:512''')
    out.append('  s_waitcnt vmcnt(0)\nL_k1_end:\n  s_endpgm')
    out.append(text_of(k.rare(0)))
    out.append(text_of(k.rare(1)))
    if verbose:
        names = {}
        for gp in tl.g:
            names.setdefault(gp.name, [0, 0])
            names[gp.name][0] += gp.cost()
            names[gp.name][1] += 16 if gp.mfma else 0
        print(' '.join(f'{n}:{c}/{i}' for n, (c, i) in names.items()))
        print('model cycles per task', tl.cost(), 'overflow ops', len(tl.overflow))
    return '\n'.join(out)


if __name__ == '__main__':
    txt = generate('k1_kernel', {})
    open('k1.s', 'w').write(txt)
```

```python
import sys
def body(variant):
    L=[]; e=L.append
    def m16(c,a,b,acc='a'):
        e(f"v_mfma_f32_16x16x32_bf16 {acc}[{c}:{c+3}], v[{a}:{a+3}], v[{b}:{b+3}], {acc}[{c}:{c+3}]")
    def m32(c,a,b,acc='a'):
        e(f"v_mfma_f32_32x32x16_bf16 {acc}[{c}:{c+15}], v[{a}:{a+3}], v[{b}:{b+3}], {acc}[{c}:{c+15}]")
    A=lambda i: 132+4*(i%7)
    B=lambda i: 4+4*(i%32)
    if variant=='a4_pv':
        for k in range(2):
            for t in range(16):
                for q in range(4): m16((t*4+q)*4, A(k*16+t), B((k*4+q)*4+t%4))
    elif variant=='b4_pv':
        for k in range(2):
            for t in range(16):
                for q in range(4): m16((t*4+q)*4, B((k*4+q)*4+t%4), A(k*16+t))
    elif variant=='a4_pvB':
        for k in range(2):
            for t in range(16):
                for q in range(4): m16((t*4+q)*4, A(k*16+t), B(k*4+q))
    elif variant=='chain8':
        for r in range(16):
            for s in range(8): m16(r*4, A(r*8+s), B(s*4+r%4))
    elif variant=='chain2':
        for r in range(16):
            for q in range(4):
                for s in range(2): m16((r*4+q)*4, A(r*2+s), B(s*4+q))
    elif variant=='chain4':
        for r in range(8):
            for q in range(4):
                for s in range(4): m16((r*4+q)*4, A(r*4+s), B(s*4+q))
    elif variant=='chain8r':
        for r in range(4):
            for q in range(4):
                for s in range(8): m16((r*4+q)*4, 132+4*s if s<7 else 196, B(s*4+q))
    elif variant=='chain2s':
        for r in range(16):
            for q in range(4):
                for s in (range(2) if q%2==0 else [1,0]): m16((r*4+q)*4, A(r*2+s), B(s*4+q))
    elif variant=='chain4s':
        for r in range(8):
            for q in range(4):
                for s in (range(4) if q%2==0 else [3,2,1,0]): m16((r*4+q)*4, A(r*4+s), B(s*4+q))
    elif variant=='chain128':
        for r in range(128): m16(0, A(r), B(r))
    elif variant=='a4_qk':
        for rep in range(2):
            for s in range(8):
                for t in range(2):
                    for q in range(4): m16((t*4+q)*4, A(rep*16+s*2+t), B(s*4+q))
    elif variant=='a4_qk_v':
        for rep in range(2):
            for s in range(8):
                for t in range(2):
                    for q in range(4): m16(164+(t*4+q)*4, A(rep*16+s*2+t), B(s*4+q), 'v')
    elif variant=='a16':
        for k in range(8):
            for q in range(16): m16(((k%4)*16+q)*4, A(k), B(q+k))
    elif variant=='ab_fixed':
        for k in range(128): m16((k%64)*4, A(0), B(0))
    elif variant=='snake':
        seq=[]
        for k in range(2):
            for t in range(16):
                qs = range(4) if t%2==0 else range(3,-1,-1)
                for q in qs: m16((t*4+q)*4, A(k*16+t), B(k*4+q))
    elif variant=='m32_a2':
        for k in range(4):
            for t in range(8):
                for q in range(2): m32((t*2+q)*16, A(k*8+t), B(k*2+q))
    elif variant=='m32_chain16':
        for r in range(4):
            for s in range(16): m32(r*16, A(r*16+s), B(s*2+r%2))
    elif variant=='m32_qk':
        for rep in range(2):
            for s in range(16):
                for q in range(2): m32(q*16, A(rep*16+s), B(s*2+q))
    return L

def kernel(name, variant, iters):
    L = []
    e = L.append
    e(f".globl {name}\n.p2align 8\n.type {name},@function\n{name}:")
    e("s_load_dwordx2 s[4:5], s[0:1], 0")
    e("s_load_dwordx2 s[6:7], s[0:1], 8")
    e("s_waitcnt lgkmcnt(0)")
    e("s_mov_b32 s8, s4\ns_and_b32 s9, s5, 0xffff\ns_mov_b32 s10, 0x1000000\ns_mov_b32 s11, 0x20000")
    e("s_mov_b32 s12, s6\ns_and_b32 s13, s7, 0xffff\ns_mov_b32 s14, 0x100000\ns_mov_b32 s15, 0x20000")
    e("v_lshlrev_b32 v200, 4, v0")
    e("s_mov_b32 s16, 0")
    for i in range(40):
        e(f"buffer_load_dwordx4 v[{4*i}:{4*i+3}], v200, s[8:11], s16 offen") if i > 0 else None
        e("s_add_u32 s16, s16, 4096")
    e("s_waitcnt vmcnt(0)")
    for i in range(256):
        e(f"v_accvgpr_write_b32 a{i}, 0")
    e('buffer_load_dwordx4 v[196:199], v200, s[8:11], s16 offen');e('s_waitcnt vmcnt(0)')
    for i in range(164,196):
        e(f"v_mov_b32 v{i}, 0")
    e("s_barrier")
    e("s_memtime s[20:21]\ns_memrealtime s[22:23]\ns_waitcnt lgkmcnt(0)")
    e(f"s_mov_b32 s17, {iters}")
    e(f"L_{name}:")
    L += body(variant)
    e("s_sub_u32 s17, s17, 1\ns_cmp_lg_u32 s17, 0")
    e(f"s_cbranch_scc1 L_{name}")
    e("s_memtime s[24:25]\ns_memrealtime s[26:27]\ns_waitcnt lgkmcnt(0)")
    e("s_sub_u32 s24, s24, s20\ns_sub_u32 s26, s26, s22")
    e("s_nop 15\ns_nop 15")
    e("v_accvgpr_read_b32 v3, a0")
    e("v_mov_b32 v0, s24\nv_mov_b32 v1, s26\nv_mov_b32 v2, s22")
    e("s_lshl_b32 s3, s2, 4\nv_mov_b32 v201, s3")
    e("buffer_store_dwordx4 v[0:3], v201, s[12:15], 0 offen")
    e("s_waitcnt vmcnt(0)\ns_endpgm")
    return "\n".join(L)

def kd(name):
    return f""".section .rodata,"a"
.p2align 6
.amdhsa_kernel {name}
  .amdhsa_next_free_vgpr 512
  .amdhsa_next_free_sgpr 102
  .amdhsa_accum_offset 256
  .amdhsa_group_segment_fixed_size 0
  .amdhsa_kernarg_size 16
  .amdhsa_user_sgpr_count 2
  .amdhsa_user_sgpr_kernarg_segment_ptr 1
  .amdhsa_system_sgpr_workgroup_id_x 1
.end_amdhsa_kernel
.text
"""
VARS=['a4_pvB','snake','chain2','chain2s','chain4','chain4s','chain8','chain8r','chain128','m32_a2']
if __name__=='__main__':
    out = '.amdgcn_target "amdgcn-amd-amdhsa--gfx950"\n.text\n'
    for v in VARS:
        out += kernel('k_'+v, v, 50) + "\n" + kd('k_'+v)
    open("clk2.s", "w").write(out)
```

```python
import sys
from gen_clk2 import kd
F = {
 'fma':  lambda i: f"v_fma_f32 v{200+i%8}, v{210+i%4}, s30, v{220+i%4}",
 'add':  lambda i: f"v_add_f32 v{200+i%8}, v{210+i%4}, v{220+i%4}",
 'exp':  lambda i: f"v_exp_f32 v{200+i%8}, v{210+i%4}",
 'cvt':  lambda i: f"v_cvt_pk_bf16_f32 v{200+i%8}, v{210+i%4}, v{220+i%4}",
 'max3': lambda i: f"v_max3_f32 v{200+i%8}, v{210+i%4}, v{220+i%4}, v{230+i%4}",
 'pkadd':lambda i: f"v_pk_add_f32 v[{200+2*(i%4)}:{201+2*(i%4)}], v[210:211], v[220:221]",
 'dot2': lambda i: f"v_dot2_f32_bf16 v{200+i%8}, v{210+i%4}, v{220+i%4}, v{230+i%4}",
 'smov': lambda i: f"s_mov_b32 s{40+i%8}, s31",
 'nop':  lambda i: f"s_nop 0",
 'wait': lambda i: f"s_waitcnt lgkmcnt(15)",
 'b128': lambda i: f"ds_read_b128 v[{232+4*(i%4)}:{235+4*(i%4)}], v199 offset:{(i%16)*1024}",
 'tr':   lambda i: f"ds_read_b64_tr_b16 v[{232+2*(i%8)}:{233+2*(i%8)}], v198 offset:{(i%16)*1024}",
 'accr': lambda i: f"v_accvgpr_read_b32 v{200+i%8}, a255",
}
def body(shape, pattern, period):
    L=[]; e=L.append
    n = 128 if shape==16 else 64
    cnt=0; pend=[]
    for k in range(n):
        a=132+4*((k//4)%7); b=4+4*(k%32)
        if shape==16:
            c=(k%60)*4
            e(f"v_mfma_f32_16x16x32_bf16 a[{c}:{c+3}], v[{a}:{a+3}], v[{b}:{b+3}], a[{c}:{c+3}]")
        else:
            c=(k%15)*16
            e(f"v_mfma_f32_32x32x16_bf16 a[{c}:{c+15}], v[{a}:{a+3}], v[{b}:{b+3}], a[{c}:{c+15}]")
        if 'bstw' in pattern and k%period in (0,2,4,6):
            w=(k%period)//2
            e(f"s_cmp_eq_u32 s35, {w}\ns_cbranch_scc0 S_{period}_{k}\nbuffer_store_dwordx4 v[240:243], v197, s[8:11], s33 offen\nS_{period}_{k}:")
        if k%period==0:
            for p in pattern:
                if p=='dma':
                    e(f"s_mov_b32 m0, {((cnt%32)*1056)}")
                    e(f"s_add_u32 s33, s33, 4096\ns_and_b32 s33, s33, 0x3ffff")
                    e("buffer_load_dwordx4 v197, s[8:11], s33 offen lds")
                elif p=='dma1':
                    e("buffer_load_dwordx4 v197, s[8:11], s33 offen lds")
                elif p=='gld':
                    e("global_load_lds_dwordx4 v197, s[4:5]")
                elif p=='bld':
                    e("buffer_load_dwordx4 v[240:243], v197, s[8:11], s33 offen")
                elif p=='bst':
                    e("buffer_store_dwordx4 v[240:243], v197, s[8:11], s33 offen")
                elif p=='gst':
                    e("global_store_dwordx4 v197, v[240:243], s[4:5]")
                elif p=='bsta':
                    e("buffer_store_dwordx4 a[252:255], v197, s[8:11], s33 offen")
                elif p=='bst2':
                    e("buffer_store_dwordx2 v[240:241], v197, s[8:11], s33 offen")
                elif p=='bst1':
                    e("buffer_store_dword v240, v197, s[8:11], s33 offen")
                elif p=='bstoob':
                    e("buffer_store_dwordx4 v[240:243], v197, s[8:11], s34 offen")
                elif p=='bstsc':
                    e("buffer_store_dwordx4 v[240:243], v197, s[8:11], s33 offen sc1")
                elif p=='bstw':
                    pend.append(k)
                elif p=='dsw':
                    e("ds_write_b128 v199, v[240:243]")
                elif p=='dmad':
                    e("buffer_load_dword v197, s[8:11], s33 offen lds")
                elif p=='bar':
                    e("s_barrier")
                elif p=='br':
                    e(f"s_cbranch_vccnz L_never")
                elif p=='m0':
                    e(f"s_mov_b32 m0, {((cnt%32)*1056)}")
                elif p=='vwait':
                    e("s_waitcnt vmcnt(6)")
                else:
                    e(F[p](cnt))
                cnt+=1
    return L

def kernel(name, shape, pattern, period, iters=20):
    L = []
    e = L.append
    e(f".globl {name}\n.p2align 8\n.type {name},@function\n{name}:")
    e("s_load_dwordx2 s[4:5], s[0:1], 0")
    e("s_load_dwordx2 s[6:7], s[0:1], 8")
    e("s_waitcnt lgkmcnt(0)")
    e("s_mov_b32 s8, s4\ns_and_b32 s9, s5, 0xffff\ns_mov_b32 s10, 0x1000000\ns_mov_b32 s11, 0x20000")
    e("s_mov_b32 s12, s6\ns_and_b32 s13, s7, 0xffff\ns_mov_b32 s14, 0x100000\ns_mov_b32 s15, 0x20000")
    e("v_and_b32 v1, 63, v0")
    e("v_lshlrev_b32 v199, 4, v1\nv_lshlrev_b32 v198, 3, v1\nv_lshlrev_b32 v197, 4, v0")
    e("v_lshrrev_b32 v196, 6, v0\ns_nop 1\nv_readfirstlane_b32 s35, v196\ns_mov_b32 s34, 0x70000000")
    e("s_mov_b32 s30, 1.0\ns_mov_b32 s31, 0\ns_mov_b32 s33, 0\ns_mov_b32 m0, 0")
    for i in range(1,197): e(f"v_mov_b32 v{i}, 0")
    for i in range(200,256): e(f"v_mov_b32 v{i}, 0")
    for i in range(256): e(f"v_accvgpr_write_b32 a{i}, 0")
    e("s_mov_b64 vcc, 0\ns_barrier")
    e("s_memtime s[20:21]\ns_memrealtime s[22:23]\ns_waitcnt lgkmcnt(0)")
    e(f"s_mov_b32 s17, {iters}")
    e(f".p2align 6\nL_{name}:")
    L += body(shape, pattern, period)
    e("s_sub_u32 s17, s17, 1\ns_cmp_lg_u32 s17, 0")
    e(f"s_cbranch_scc1 L_{name}")
    e("s_waitcnt lgkmcnt(0)")
    e("s_memtime s[24:25]\ns_memrealtime s[26:27]\ns_waitcnt lgkmcnt(0) vmcnt(0)")
    e("s_sub_u32 s24, s24, s20\ns_sub_u32 s26, s26, s22")
    e("s_nop 15\ns_nop 15")
    e("v_accvgpr_read_b32 v3, a0")
    e("v_mov_b32 v0, s24\nv_mov_b32 v1, s26\nv_mov_b32 v2, s22")
    e("s_lshl_b32 s3, s2, 4\nv_mov_b32 v201, s3")
    e("buffer_store_dwordx4 v[0:3], v201, s[12:15], 0 offen")
    e("s_waitcnt vmcnt(0)\ns_endpgm")
    return "\n".join(L).replace("L_never", f"E_{name}") + f"\nE_{name}:\ns_endpgm"

T=[(16,p.split('+'),per) for p,per in [
 ('nop',64),('bst',16),('bst',32),('bst',64),('gst',16),('gst',32),('gst',64),('bsta',16),('bsta',32),('bst2',16),('bst2',32),('bst1',16),('bstoob',16),('bstoob',32),
 ('bstsc',32),('bstw',16),('bstw',32),('dsw',16),('dsw',32),('bld',32),('gld',32),('dma1',32)]]
NAMES=[f"k{i}" for i in range(len(T))]
if __name__=='__main__':
    for part in range((len(T)+39)//40):
        out = '.amdgcn_target "amdgcn-amd-amdhsa--gfx950"\n.text\n'
        for n,(sh,p,per) in list(zip(NAMES,T))[part*40:part*40+40]:
            out += kernel(n, sh,p,per) + "\n" + kd(n)
        open(f"slot{part}.s", "w").write(out)
    print(len(T))
```
